```python
import torch

def _softmax(x, axis=-1):
    return torch.softmax(x, dim=axis)
def _gelu(x):
    return torch.nn.functional.gelu(x, approximate="tanh")
def _silu(x):
    return torch.nn.functional.silu(x)
def _sigmoid(x):
    return torch.sigmoid(x)
def _layernorm(x, axis=-1, eps=1e-5):
    m = x.mean(dim=axis, keepdim=True)
    v = x.var(dim=axis, keepdim=True, unbiased=False)
    return (x - m) / torch.sqrt(v + eps)
def _scatter_add(tgt, idx, src, axis=0):
    return tgt.clone().index_add_(axis, idx, src)
def _segment_sum(src, seg, n):
    out = torch.zeros((n,) + src.shape[1:], dtype=src.dtype)
    return out.index_add_(0, seg, src)
def _pad(x, pw):
    flat = tuple(v for pair in reversed(pw) for v in pair)
    return torch.nn.functional.pad(x, flat)

kernel_name = 'parallel_sum__sliding_block__glu_gated_geglu__prompt'

def setup_inputs():

    _w = (lambda a: (lambda t: t.to(torch.bfloat16) if t.is_floating_point() else t)(torch.as_tensor(a)))
    def _A_setup():
        B, S, D = 1, 2048, 640
        return {
            "x": _w((lambda *s: torch.randn(*s, dtype=torch.bfloat16) * 0.05)(B, S, D)),
            "wqkv": _w((lambda *s: torch.randn(*s, dtype=torch.bfloat16) * 0.05)(D, 3 * D)),
            "wo": _w((lambda *s: torch.randn(*s, dtype=torch.bfloat16) * 0.05)(D, D)),
        }
    _A_in = _A_setup()

    def _B_setup():
        B, S, Dm, Df = 1, 2048, 640, 1536
        return {
            "x": _w((lambda *s: torch.randn(*s, dtype=torch.bfloat16) * 0.05)(B, S, Dm)),
            "w_gate": _w((lambda *s: torch.randn(*s, dtype=torch.bfloat16) * 0.8)(Dm, Df) * (Dm ** -0.5)),
            "w_up": _w((lambda *s: torch.randn(*s, dtype=torch.bfloat16) * 0.8)(Dm, Df) * (Dm ** -0.5)),
            "w_down": _w((lambda *s: torch.randn(*s, dtype=torch.bfloat16) * 0.8)(Df, Dm) * (Df ** -0.5)),
        }
    _B_in = _B_setup()

    return {
        "A_x": _A_in["x"],
        "A_wqkv": _A_in["wqkv"],
        "A_wo": _A_in["wo"],
        "B_x": _B_in["x"],
        "B_w_gate": _B_in["w_gate"],
        "B_w_up": _B_in["w_up"],
        "B_w_down": _B_in["w_down"],
    }

def reference(A_x, A_wqkv, A_wo, B_x, B_w_gate, B_w_up, B_w_down):
    def _A_ref(x, wqkv, wo):
        B, S, D = x.shape
        H = 32; Dh = D // H; W = 256
        qkv = (lambda x, *d: x.permute(*d))((x @ wqkv).reshape(B, S, 3, H, Dh), 2, 0, 3, 1, 4)
        q, k, v = qkv[0], qkv[1], qkv[2]
        scores = torch.einsum("bhqd,bhkd->bhqk", q, k) * (Dh ** -0.5)
        idx = torch.arange(S)
        mask = (idx[:, None] - idx[None, :] >= 0) & (idx[:, None] - idx[None, :] < W)
        scores = torch.where(mask[None, None], scores, -1e9)
        p = _softmax(scores, axis=-1)
        o = torch.einsum("bhqk,bhkd->bhqd", p, v)
        return (lambda x, *d: x.permute(*d))(o, 0, 2, 1, 3).reshape(B, S, D) @ wo

    def _B_ref(x, w_gate, w_up, w_down):
        g = torch.einsum("bsd,df->bsf", x, w_gate)
        u = torch.einsum("bsd,df->bsf", x, w_up)
        h = _gelu(g) * u
        return torch.einsum("bsf,fd->bsd", h, w_down)

    x = A_x
    xn = _layernorm(x, axis=-1)
    return x + _A_ref(xn, A_wqkv, A_wo) + _B_ref(xn, B_w_gate, B_w_up, B_w_down)
```

```python
import re, copy

REG_RE = re.compile(r'^(-?)(\|?)([vas])(?:(\d+)|\[(\d+):(\d+)\])\|?$')

def regs_of(tok):
    tok = tok.strip()
    m = re.match(r'^(?:neg|abs)\((.*)\)$', tok)
    if m: tok = m.group(1)
    if tok in ('vcc', 'exec'):
        return {(tok, 0), (tok, 1)}
    if tok in ('vcc_lo', 'exec_lo'): return {(tok[:-3], 0)}
    if tok in ('vcc_hi', 'exec_hi'): return {(tok[:-3], 1)}
    if tok == 'm0': return {('m0', 0)}
    m = REG_RE.match(tok)
    if not m: return set()
    f = m.group(3)
    if m.group(4) is not None:
        return {(f, int(m.group(4)))}
    return {(f, i) for i in range(int(m.group(5)), int(m.group(6)) + 1)}

def split_ops(s):
    ops, depth, cur = [], 0, ''
    for ch in s + ',':
        if ch in '[(': depth += 1
        elif ch in '])': depth -= 1
        if ch == ',' and depth == 0:
            if cur.strip(): ops.append(cur.strip())
            cur = ''
        else: cur += ch
    mods = []
    out = []
    for o in ops:
        parts = o.split()
        out.append(parts[0]); mods += parts[1:]
    return out, mods

TRANS = ('v_exp_f32', 'v_log_f32', 'v_rcp_f32', 'v_rsq_f32', 'v_sqrt_f32', 'v_sin_f32', 'v_cos_f32', 'v_rcp_iflag_f32')

class Inst:
    __slots__ = ('text', 'op', 'ops', 'mods', 'kind', 'reads', 'writes', 'passes', 'srcC', 'srcAB', 'tok', 'nslots', 'data')
    def __init__(self, text, tok=None):
        self.text = text.strip()
        t = self.text.split(';')[0].strip()
        sp = t.split(None, 1)
        self.op = sp[0]
        self.ops, self.mods = split_ops(sp[1]) if len(sp) > 1 else ([], [])
        self.tok = tok
        self.passes = 0; self.srcC = set(); self.srcAB = set(); self.data = set()
        self.nslots = 1
        op, ops, mods = self.op, self.ops, self.mods
        R = lambda lst: set().union(*[regs_of(x) for x in lst]) if lst else set()
        base = re.sub(r'_(e32|e64|dpp|sdwa)$', '', op)
        if op.startswith('v_mfma'):
            self.kind = 'mfma'
            self.writes = R(ops[:1]); self.reads = R(ops[1:])
            self.srcAB = R(ops[1:3]); self.srcC = R(ops[3:4])
            self.passes = 8 if '32x32' in op else 4
        elif op.startswith('v_cmp'):
            self.kind = 'valu'
            self.writes = R(ops[:1]); self.reads = R(ops[1:])
        elif op.startswith('v_'):
            self.kind = 'trans' if base in TRANS else 'valu'
            self.writes = R(ops[:1]); self.reads = R(ops[1:])
            if base in ('v_fmac_f32', 'v_dot2c_f32_bf16', 'v_writelane_b32') or 'd16' in op or op.endswith('_dpp'):
                self.reads |= self.writes
            if base.startswith('v_permlane') and 'swap' in base:
                self.writes = R(ops[:2]); self.reads = R(ops[:2])
            if base in ('v_add_co_u32', 'v_addc_co_u32', 'v_sub_co_u32', 'v_subb_co_u32'):
                self.writes = R(ops[:2]); self.reads = R(ops[2:])
        elif op.startswith('ds_read') or op.startswith('ds_bpermute') or op.startswith('ds_swizzle'):
            self.kind = 'ds'
            self.writes = R(ops[:1]); self.reads = R(ops[1:])
        elif op.startswith('ds_write'):
            self.kind = 'ds'
            self.writes = set(); self.reads = R(ops)
        elif op.startswith('buffer_load') or op.startswith('global_load'):
            if 'lds' in mods or '_lds_' in op:
                self.kind = 'dma'
                self.writes = set(); self.reads = R(ops) | {('m0', 0)}
            else:
                self.kind = 'vload'
                self.writes = R(ops[:1]); self.reads = R(ops[1:])
                if 'd16' in op: self.reads |= self.writes
        elif op.startswith('buffer_store') or op.startswith('global_store'):
            self.kind = 'vstore'
            self.writes = set(); self.reads = R(ops)
            self.data = R(ops[:1]) if op.startswith('buffer') else R(ops[1:2])
        elif op.startswith('buffer_atomic') or op.startswith('global_atomic'):
            self.kind = 'vstore'
            self.writes = set(); self.reads = R(ops)
            if 'sc0' in mods:
                self.kind = 'vload'; self.writes = R(ops[:1])
        elif op in ('buffer_inv', 'buffer_wbl2'):
            self.kind = 'vstore'; self.writes = set(); self.reads = set()
        elif op.startswith('s_load') or op.startswith('s_buffer_load') or op in ('s_memtime', 's_memrealtime'):
            self.kind = 'smem'
            self.writes = R(ops[:1]); self.reads = R(ops[1:])
        elif op == 's_nop':
            self.kind = 'nop'; self.reads = set(); self.writes = set()
            self.nslots = int(ops[0], 0) + 1
        elif op in ('s_waitcnt', 's_barrier', 's_endpgm', 's_setprio', 's_sleep') or op.startswith('s_cbranch') or op == 's_branch':
            self.kind = 'ctl'; self.reads = set(); self.writes = set()
        elif op.startswith('s_cmp') or op.startswith('s_bitcmp'):
            self.kind = 'salu'; self.writes = set(); self.reads = R(ops)
        elif op.startswith('s_'):
            self.kind = 'salu'
            self.writes = R(ops[:1]); self.reads = R(ops[1:])
            if 'saveexec' in op: self.writes |= regs_of('exec')
            if op in ('s_addk_i32', 's_mulk_i32'): self.reads |= self.writes
            if op == 's_setpc_b64': self.reads = R(ops); self.writes = set()
        else:
            raise ValueError('unknown instruction: ' + text)

class Prog:
    def __init__(self):
        self.lines = []
        self.vmq = []
        self.lgq = []
        self.hist = []
        self.pos = 0
        self.nops = 0
        self.count = {}
    def snapshot(self):
        return (list(self.vmq), list(self.lgq), list(self.hist), self.pos)
    def restore(self, s):
        self.vmq, self.lgq, self.hist, self.pos = list(s[0]), list(s[1]), list(s[2]), s[3]
    def raw(self, text):
        self.lines.append(text)
    def label(self, name):
        self.lines.append(name + ':')
    def comment(self, c):
        self.lines.append('; ' + c)
    def _push(self, ins):
        self.lines.append('  ' + ins.text)
        self.hist.append((self.pos, ins))
        self.pos += ins.nslots
        self.hist = [h for h in self.hist if self.pos - h[0] < 40]
        self.count[ins.kind] = self.count.get(ins.kind, 0) + 1
    def waitcnt(self, vm=None, lgkm=None):
        parts = []
        if vm is not None:
            vm = min(vm, 63)
            parts.append(f'vmcnt({vm})')
            if len(self.vmq) > vm: self.vmq = self.vmq[len(self.vmq) - vm:] if vm else []
        if lgkm is not None:
            lgkm = min(lgkm, 15)
            parts.append(f'lgkmcnt({lgkm})')
            if len(self.lgq) > lgkm: self.lgq = self.lgq[len(self.lgq) - lgkm:] if lgkm else []
        self._push(Inst('s_waitcnt ' + ' '.join(parts)))
    def need_vm_tok(self, pred):
        idx = -1
        for i, (w, t) in enumerate(self.vmq):
            if t is not None and pred(t): idx = i
        return None if idx < 0 else len(self.vmq) - 1 - idx
    def wait_tok(self, pred, lgkm=None):
        n = self.need_vm_tok(pred)
        if n is not None or lgkm is not None:
            self.waitcnt(vm=n, lgkm=lgkm)
    def wait_regs(self, regs):
        rs = set().union(*[regs_of(r) for r in regs])
        self._waits(rs)
    def _waits(self, touch):
        vm = lg = None
        for i, (w, t) in enumerate(self.vmq):
            if w & touch: vm = len(self.vmq) - 1 - i
        for i, (w, sm, t) in enumerate(self.lgq):
            if w & touch:
                lg = len(self.lgq) - 1 - i
        if lg is not None and any(sm for (_, sm, _) in self.lgq): lg = 0
        if vm is not None or lg is not None:
            self.waitcnt(vm=vm, lgkm=lg)
    def _hazard(self, c):
        need = 0
        isvalu = c.kind in ('valu', 'trans')
        vgw = lambda s: {r for r in s if r[0] in ('v', 'a')}
        sgw = lambda s: {r for r in s if r[0] in ('s', 'vcc')}
        cb = re.sub(r'_(e32|e64)$', '', c.op)
        for pos, p in self.hist:
            dist = self.pos - pos - p.nslots
            req = 0
            pvalu = p.kind in ('valu', 'trans')
            if pvalu and c.kind == 'mfma' and vgw(p.writes) & c.reads: req = max(req, 2)
            if p.kind == 'mfma':
                big = 12 if p.passes == 8 else 8
                if (isvalu and (p.writes & (c.reads | c.writes))): req = max(req, big)
                if c.kind in ('ds', 'vload', 'vstore', 'dma') and (p.writes & (c.reads | c.writes)): req = max(req, big)
                if c.kind == 'mfma':
                    if p.writes & c.srcAB: req = max(req, big)
                    if p.writes & c.srcC and not (p.writes == c.srcC and p.passes == c.passes):
                        req = max(req, 10 if p.passes == 8 else 6)
                if isvalu and (p.srcC & c.writes): req = max(req, 7 if p.passes == 8 else 3)
            if p.kind == 'trans' and c.kind == 'valu' and (p.writes & c.reads): req = max(req, 1)
            if pvalu and sgw(p.writes):
                sw = sgw(p.writes)
                cr = set(c.reads)
                if cb in ('v_cndmask_b32', 'v_addc_co_u32', 'v_div_fmas_f32') : cr |= regs_of('vcc') if 'vcc' in c.ops else set()
                if isvalu and sw & cr: req = max(req, 4 if cb in ('v_readlane_b32', 'v_writelane_b32', 'v_div_fmas_f32') else 2)
                if c.kind in ('vload', 'vstore', 'dma') and sw & c.reads: req = max(req, 5)
                if c.kind in ('salu', 'smem') and sw & c.reads: req = max(req, 1)
            if pvalu and vgw(p.writes) & c.reads:
                if cb in ('v_readlane_b32', 'v_readfirstlane_b32'): req = max(req, 1)
                if c.op.endswith('_dpp') or cb.startswith('v_permlane'): req = max(req, 2)
            if p.kind == 'salu' and ('m0', 0) in p.writes and c.kind == 'dma': req = max(req, 1)
            if p.kind == 'vstore' and ('x4' in p.op or 'x3' in p.op) and (p.data & c.writes):
                req = max(req, 2 if isvalu else 1)
            if req > dist: need = max(need, req - dist)
        return need
    def emit(self, text, tok=None):
        for line in text.strip().split('\n'):
            line = line.strip()
            if not line or line.startswith(';'): continue
            if line.endswith(':'):
                self.label(line[:-1]); continue
            ins = Inst(line, tok)
            if ins.op == 's_waitcnt':
                vm = re.search(r'vmcnt\((\d+)\)', line); lg = re.search(r'lgkmcnt\((\d+)\)', line)
                self.waitcnt(vm=int(vm.group(1)) if vm else None, lgkm=int(lg.group(1)) if lg else None)
                continue
            self._waits(ins.reads | ins.writes)
            n = self._hazard(ins)
            while n > 0:
                k = min(n, 16)
                self._push(Inst(f's_nop {k-1}'))
                self.nops += k
                n -= k
            self._push(ins)
            if ins.kind in ('vload', 'vstore', 'dma'):
                self.vmq.append((ins.writes, tok))
            elif ins.kind == 'ds':
                self.lgq.append((ins.writes, False, tok))
            elif ins.kind == 'smem':
                self.lgq.append((ins.writes, True, tok))
    __call__ = emit
    def text(self):
        return '\n'.join(self.lines) + '\n'

def kernel(name, prog, vgpr, accum, sgpr=96, extra=''):
    return f""".text
.globl {name}
.p2align 8
.type {name},@function
{name}:
{prog.text()}
.section .rodata,"a"
.p2align 6
.amdhsa_kernel {name}
  .amdhsa_next_free_vgpr {vgpr}
  .amdhsa_next_free_sgpr {sgpr}
  .amdhsa_accum_offset {accum}
  .amdhsa_group_segment_fixed_size 0
  .amdhsa_kernarg_size 80
  .amdhsa_user_sgpr_count 2
  .amdhsa_user_sgpr_kernarg_segment_ptr 1
  .amdhsa_system_sgpr_workgroup_id_x 1
{extra}.end_amdhsa_kernel
"""
```

```python
import struct, math
from asmb import *

S, D, DF, H, DH = 2048, 640, 1536, 32, 20
WS_XN   = 0
WS_QKV  = 0x300000
WS_ACT  = 0xB00000
WS_W2P  = 0x1400000
WS_END  = 0x1700000
ACT_TB  = 272 * 1024

def f2u(x): return struct.unpack('<I', struct.pack('<f', x))[0]
LOG2E = 1.4426950408889634
QSCALE = LOG2E / math.sqrt(20.0)
K0 = math.sqrt(2.0 / math.pi)
GC0 = -2.0 * K0 * LOG2E
GC1 = GC0 * 0.044715

KA_X, KA_WQKV, KA_WO, KA_BX, KA_WG, KA_WU, KA_WD, KA_OUT, KA_DBG, KA_WS = [8 * i for i in range(10)]

def srd(P, d, base, nbytes, off=0):
    if off:
        P(f's_add_u32 s{d}, s{base}, {hex(off)}')
        P(f's_addc_u32 s{d+1}, s{base+1}, 0')
    else:
        P(f's_mov_b32 s{d}, s{base}')
        P(f's_mov_b32 s{d+1}, s{base+1}')
    P(f's_mov_b32 s{d+2}, {hex(nbytes)}')
    P(f's_mov_b32 s{d+3}, 0x20000')

def wave_sum(P, v, t):
    for m in ('quad_perm:[1,0,3,2]', 'quad_perm:[2,3,0,1]', 'row_half_mirror', 'row_mirror'):
        P(f'v_add_f32_dpp v{v}, v{v}, v{v} {m} row_mask:0xf bank_mask:0xf')
    for sw in ('v_permlane16_swap_b32', 'v_permlane32_swap_b32'):
        P(f'v_mov_b32 v{t}, v{v}')
        P(f'{sw} v{t}, v{v}')
        P(f'v_add_f32 v{v}, v{t}, v{v}')
```

```python
from common import *

def gen_k0():
    P = Prog()
    P('s_cmp_ge_u32 s2, 256')
    P('s_cbranch_scc1 L_k0_end')
    P(f's_load_dwordx2 s[4:5], s[0:1], {KA_X}')
    P(f's_load_dwordx2 s[6:7], s[0:1], {KA_WO}')
    P(f's_load_dwordx2 s[8:9], s[0:1], {KA_WD}')
    P(f's_load_dwordx2 s[10:11], s[0:1], {KA_WS}')
    P('v_and_b32 v1, 63, v0')
    P('v_lshrrev_b32 v2, 6, v0')
    P('v_readfirstlane_b32 s3, v2')
    P('s_lshl_b32 s12, s2, 2')
    P('s_add_u32 s12, s12, s3')
    srd(P, 16, 4, S * D * 2)
    srd(P, 20, 10, S * D * 2, WS_XN)
    srd(P, 24, 10, 2720 * 1024, WS_W2P)
    P('v_lshlrev_b32 v3, 4, v1')
    P('v_lshlrev_b32 v4, 2, v1')
    P('s_mul_i32 s13, s12, 2560')
    for r in range(2):
        b = 10 + 6 * r
        P(f'buffer_load_dwordx4 v[{b}:{b+3}], v3, s[16:19], s13 offen offset:{1280*r}')
        P(f'buffer_load_dword v{b+4}, v4, s[16:19], s13 offen offset:{1280*r+1024}')
    P('v_and_b32 v5, 15, v1')
    P('v_lshrrev_b32 v6, 4, v1')
    for q in range(3):
        P(f's_mul_i32 s30, s12, 3')
        P(f's_add_u32 s30, s30, {q}')
        P('s_min_u32 s30, s30, 2719')
        P(f's_mul_hi_u32 s31, s30, {(2**32 + 4) // 5}')
        P('s_mul_i32 s32, s31, 5')
        P('s_sub_u32 s32, s30, s32')
        P(f's_mul_hi_u32 s33, s31, {(2**32 + 67) // 68}')
        P('s_mul_i32 s34, s33, 68')
        P('s_sub_u32 s34, s31, s34')
        P('s_cmp_lt_u32 s34, 48')
        P('s_cselect_b32 s40, s8, s6')
        P('s_cselect_b32 s41, s9, s7')
        P(f's_cselect_b32 s42, {hex(DF*D*2)}, {hex(D*D*2)}') if False else None
        P(f's_mov_b32 s35, {D*D*2}')
        P(f's_cselect_b32 s42, {DF*D*2}, s35')
        P('s_mov_b32 s43, 0x20000')
        P('s_cselect_b32 s36, 16, 20')
        P('s_cselect_b32 s37, 0, 48')
        P('s_cmp_lt_u32 s34, 64')
        P('s_cselect_b32 s36, s36, 80')
        P('s_cselect_b32 s37, s37, 64')
        P('s_cselect_b32 s38, 4, 40')
        P('s_cselect_b32 s39, 0, 16')
        P('s_cselect_b32 s44, 8, 20')
        P('s_mul_i32 s44, s44, 1280')
        P('s_sub_u32 s34, s34, s37')
        P('s_lshl_b32 s34, s34, 2')
        P('v_add_u32 v7, s34, v6')
        P('v_lshrrev_b32 v8, 1, v7')
        P('v_and_b32 v7, 1, v7')
        P('v_mul_u32_u24 v8, s36, v8')
        P('v_mul_u32_u24 v7, s38, v7')
        P('v_add3_u32 v7, v7, v8, s39')
        P('v_mul_u32_u24 v7, 1280, v7')
        P('s_mul_i32 s33, s33, 80')
        P('s_lshl_b32 s32, s32, 4')
        P('s_add_u32 s33, s33, s32')
        P('v_add_u32 v8, s33, v5')
        P('v_lshl_add_u32 v7, v8, 1, v7')
        b = 40 + 8 * q
        for e in range(4):
            P(f'buffer_load_ushort v{b+e}, v7, s[40:43], 0 offen offset:{1280*e}')
        for e in range(4):
            P(f'buffer_load_ushort v{b+4+e}, v7, s[40:43], s44 offen offset:{1280*e}')
        P(f's_lshl_b32 s{50+q}, s30, 10')
    for r in range(2):
        b = 10 + 6 * r
        f = 70
        for i in range(5):
            P(f'v_lshlrev_b32 v{f+2*i}, 16, v{b+i}')
            P(f'v_and_b32 v{f+2*i+1}, 0xffff0000, v{b+i}')
        P(f'v_add_f32 v80, v{f}, v{f+1}')
        for i in range(2, 10): P(f'v_add_f32 v80, v80, v{f+i}')
        wave_sum(P, 80, 81)
        P(f'v_mul_f32 v80, {hex(f2u(1.0/640))}, v80')
        P(f'v_sub_f32 v82, v{f}, v80')
        P('v_mul_f32 v83, v82, v82')
        for i in range(1, 10):
            P(f'v_sub_f32 v82, v{f+i}, v80')
            P('v_fmac_f32 v83, v82, v82')
        wave_sum(P, 83, 81)
        P(f'v_mul_f32 v83, {hex(f2u(1.0/640))}, v83')
        P('v_cvt_pk_bf16_f32 v84, v80, v83')
        P('v_lshlrev_b32 v80, 16, v84')
        P('v_and_b32 v83, 0xffff0000, v84')
        P(f'v_add_f32 v83, {hex(f2u(1e-5))}, v83')
        P('v_cvt_pk_bf16_f32 v83, v83, v83')
        P('v_and_b32 v83, 0xffff0000, v83')
        P('v_sqrt_f32 v83, v83')
        P('v_cvt_pk_bf16_f32 v83, v83, v83')
        P('v_and_b32 v83, 0xffff0000, v83')
        P('v_rcp_f32 v83, v83')
        for i in range(10): P(f'v_sub_f32 v{f+i}, v{f+i}, v80')
        for i in range(5):
            P(f'v_cvt_pk_bf16_f32 v84, v{f+2*i}, v{f+2*i+1}')
            P(f'v_lshlrev_b32 v{f+2*i}, 16, v84')
            P(f'v_and_b32 v{f+2*i+1}, 0xffff0000, v84')
        for i in range(10): P(f'v_mul_f32 v{f+i}, v{f+i}, v83')
        for i in range(5):
            P(f'v_cvt_pk_bf16_f32 v{b+i}, v{f+2*i}, v{f+2*i+1}')
        P(f'buffer_store_dwordx4 v[{b}:{b+3}], v3, s[20:23], s13 offen offset:{1280*r}')
        P(f'buffer_store_dword v{b+4}, v4, s[20:23], s13 offen offset:{1280*r+1024}')
    for q in range(3):
        b = 40 + 8 * q
        o = 90 + 4 * q
        for i in range(4):
            P(f'v_lshl_or_b32 v{o+i}, v{b+2*i+1}, 16, v{b+2*i}')
        P(f'buffer_store_dwordx4 v[{o}:{o+3}], v3, s[24:27], s{50+q} offen')
    P.label('L_k0_end')
    P('s_endpgm')
    return kernel('k0_kernel', P, 104, 104)
```

```python
from common import *

V_TR = 1
V_DW = 4
V_STQ = 8
V_STH = 9
V_C0, V_C1 = 10, 11
V_T = 12
V_PK = 20
V_LANE = 36
V_R8 = 37
V_CB = 38
V_WF = 48
ACC = [64, 128]
V_X2 = 192
V_XA = 128
V_DX = 140

S_X, S_W, S_Q, S_H = 16, [20, 24, 28], 32, 36
S_XO = 40
S_WO = [41, 42, 43]
S_WSTEP = [44, 45, 46]
S_LDSW = 47
S_PITCH = [48, 49, 50]
S_QO = [51, 52, 53]
S_QS = [54, 55, 56]
S_HO = [57, 58]
S_TYPE, S_R3 = 59, 60
S_TMP = 61

def xreg(ks, sub):
    if ks < 32:
        r = ks * 8 + sub * 4
        return f'a[{r}:{r+3}]'
    r = V_X2 + (ks - 32) * 8 + sub * 4
    return f'v[{r}:{r+3}]'

def epi_gu(acc, so):
    L = []
    pk = 0
    for sub in range(2):
        g = acc + sub * 16; u = acc + 32 + sub * 16
        for blk in range(2):
            q = V_PK + 4 * (pk % 4); pk += 1
            for half in range(2):
                rs = [blk * 8 + half * 4 + i for i in range(4)]
                T = [V_T + 4 * half + i for i in range(4)]
                for r, t in zip(rs, T): L.append(f'v_mul_f32 v{t}, v{g+r}, v{g+r}')
                for r, t in zip(rs, T): L.append(f'v_fma_f32 v{t}, v{t}, v{V_C1}, v{V_C0}')
                for r, t in zip(rs, T): L.append(f'v_mul_f32 v{t}, v{t}, v{g+r}')
                for r, t in zip(rs, T):
                    L.append(f'v_exp_f32 v{t}, v{t}')
                    L.append(f'v_mul_f32 v{u+r}, v{g+r}, v{u+r}')
                for r, t in zip(rs, T): L.append(f'v_add_f32 v{t}, 1.0, v{t}')
                for r, t in zip(rs, T): L.append(f'v_rcp_f32 v{t}, v{t}')
                for r, t in zip(rs, T): L.append(f'v_mul_f32 v{u+r}, v{u+r}, v{t}')
                L.append(f'v_cvt_pk_bf16_f32 v{q+2*half}, v{u+rs[0]}, v{u+rs[1]}')
                L.append(f'v_cvt_pk_bf16_f32 v{q+2*half+1}, v{u+rs[2]}, v{u+rs[3]}')
            L.append(f'buffer_store_dwordx4 v[{q}:{q+3}], v{V_STH}, s[{S_H}:{S_H+3}], s{so} offen offset:{sub*512 + blk*2048}')
    return L

def epi_q(acc, so, sc):
    L = []
    pk = 0
    for q4 in range(4):
        if q4: L.append(f's_add_u32 s{so}, s{so}, 0x8000')
        for sub in range(2):
            a = acc + sub * 16 + q4 * 4
            q = V_PK + 2 * (pk % 8); pk += 1
            for i in range(4): L.append(f'v_mul_f32 v{a+i}, s{sc}, v{a+i}')
            L.append(f'v_cvt_pk_bf16_f32 v{q}, v{a}, v{a+1}')
            L.append(f'v_cvt_pk_bf16_f32 v{q+1}, v{a+2}, v{a+3}')
            L.append(f'buffer_store_dwordx2 v[{q}:{q+1}], v{V_STQ}, s[{S_Q}:{S_Q+3}], s{so} offen offset:{sub*256}')
    return L

def cost(t):
    op = t.split()[0]
    return 2 if op in TRANS else 1

NSLOT = 10
AH = 2
class G1:
    def __init__(self, P):
        self.P = P
        self.stages = []
        self.frags = []
        self.loads = []
        for s in range(10):
            lx = len(self.loads); self.loads.append(dict(kind='x', rnd=0))
            lw = len(self.loads); self.loads.append(dict(kind='w', rnd=0))
            self._stage(0, [lx, lw], [(lw, b * 8192 + j * 2048, 4 * s + j, b) for j in range(4) for b in range(2)], lx)
        for s in range(10):
            lw = len(self.loads); self.loads.append(dict(kind='w', rnd=1))
            self._stage(1, [lw], [(lw, b * 8192 + j * 2048, 4 * s + j, b) for j in range(4) for b in range(2)], None)
        for q in range(5):
            lw = len(self.loads); self.loads.append(dict(kind='w', rnd=2))
            self._stage(2, [lw], [(lw, j * 2048, 8 * q + j, 0) for j in range(8)], None)
        self.issued = 0
        self.dmaq = []
        self.wround = 0
    def _stage(self, rnd, loads, fr, lx):
        t = len(self.stages)
        self.stages.append(dict(rnd=rnd, loads=loads, first=len(self.frags)))
        for (l, off, ks, b) in fr:
            self.frags.append(dict(stage=t, load=l, off=off, ks=ks, b=b, rnd=rnd, lx=lx))
    def wdma_setup(self, rnd):
        L = [f'v_mul_u32_u24 v{V_DW}, s{S_PITCH[rnd]}, v{V_R8}', f'v_add_u32 v{V_DW}, v{V_DW}, v{V_CB}',
             f's_lshl_b32 s{S_TMP}, s{S_PITCH[rnd]}, 3', f's_sub_u32 s{S_TMP}, s{S_TMP}, 1024']
        for j in range(1, 4): L.append(f'v_add_u32 v{V_DW+j}, s{S_TMP}, v{V_DW+j-1}')
        return L
    def load_groups(self, i):
        ld = self.loads[i]
        slot = (i % NSLOT) * 16384
        G = []
        pre = []
        if ld['kind'] == 'w' and ld['rnd'] != self.wround:
            self.wround = ld['rnd']
            G.append([(t, None) for t in self.wdma_setup(ld['rnd'])])
        pre.append((f's_add_u32 m0, s{S_LDSW}, {slot}', None))
        for j in range(4):
            if ld['kind'] == 'x':
                t = f'buffer_load_dwordx4 v{V_DX+j}, s[{S_X}:{S_X+3}], s{S_XO} offen offset:{j*1024} lds'
            else:
                r = ld['rnd']
                t = f'buffer_load_dwordx4 v{V_DW+j}, s[{S_W[r]}:{S_W[r]+3}], s{S_WO[r]} offen offset:{j*1024} lds'
            g = pre + [(t, ('L', i))]
            pre = []
            if j == 3:
                if ld['kind'] == 'x': g.append((f's_add_u32 s{S_XO}, s{S_XO}, 128', None))
                else: g.append((f's_add_u32 s{S_WO[ld["rnd"]]}, s{S_WO[ld["rnd"]]}, s{S_WSTEP[ld["rnd"]]}', None))
            G.append(g)
        return G
    def queue_loads(self, upto, maxload):
        while self.issued < min(upto, maxload):
            self.dmaq += self.load_groups(self.issued)
            self.issued += 1
    def flush_dma(self):
        for g in self.dmaq:
            for t, tok in g: self.P(t, tok)
        self.dmaq = []
    def tr_reads(self, fi):
        f = self.frags[fi]
        a = (f['load'] % NSLOT) * 16384 + f['off']
        r = V_WF + 4 * (fi % 4)
        return [f'ds_read_b64_tr_b16 v[{r+2*h}:{r+2*h+1}], v{V_TR + a // 65536} offset:{a % 65536 + 256*h}' for h in range(2)]
    def x_read(self, fi):
        f = self.frags[fi]
        if f['lx'] is None: return None
        a = (f['lx'] % NSLOT) * 16384
        sub = f['b']
        return a
    def x_reads_for(self, fi):
        f = self.frags[fi]
        if f['lx'] is None or f['b'] != 0: return []
        a = (f['lx'] % NSLOT) * 16384
        j = f['ks'] % 4
        return [f'ds_read_b128 {xreg(f["ks"], sub)}, v{V_XA + (a // 65536) * 4 + j} offset:{a % 65536 + sub * 4096}' for sub in range(2)]
    def enter_stage(self, t, maxload):
        P = self.P
        st = self.stages[t]
        assert self.issued > max(st['loads'])
        if any(tok is not None and tok[1] in st['loads'] for g in self.dmaq for (_, tok) in g):
            self.flush_dma()
        P.wait_tok(lambda k: k[0] == 'L' and k[1] <= max(st['loads']))
        P('s_barrier')
        if t >= 1:
            self.queue_loads(self.stages[t - 1]['loads'][0] + NSLOT, maxload)
    def reads_for(self, fi, nfr, maxload):
        return self.x_reads_for(fi), self.tr_reads(fi)
    def run(self, f0, f1, fend, fill, maxload, budget=6, delay=3):
        P = self.P
        fill = list(fill)
        for fi in range(f0, f1):
            f = self.frags[fi]
            nx = fi + AH
            xr, tr = [], []
            bar = False
            if nx < fend:
                if self.stages[self.frags[nx]['stage']]['first'] == nx: bar = True
                xr, tr = self.x_reads_for(nx), self.tr_reads(nx)
            w = V_WF + 4 * (fi % 4)
            accb = ACC[f['rnd'] % 2] + f['b'] * 32
            for sub in range(2):
                a = accb + sub * 16
                c = '0' if f['ks'] == 0 else f'v[{a}:{a+15}]'
                P(f'v_mfma_f32_32x32x16_bf16 v[{a}:{a+15}], v[{w}:{w+3}], {xreg(f["ks"], sub)}, {c}')
                used = 1 if sub == 1 else 0
                if sub == 0 and bar:
                    self.enter_stage(self.frags[nx]['stage'], maxload); used += 3
                if tr:
                    P(tr[sub]); used += 1
                if xr:
                    P(xr[sub]); used += 1
                if self.dmaq and not (sub == 0 and bar):
                    g = self.dmaq.pop(0)
                    for t, tok in g: P(t, tok)
                    used += len(g) + 1
                if fi - f0 >= delay:
                    while fill and used + cost(fill[0]) <= budget:
                        t = fill.pop(0); P(t); used += cost(t)
        return fill

def gen_k1():
    P = Prog()
    P('s_cmp_ge_u32 s2, 256')
    P('s_cbranch_scc1 L_k1_end')
    P(f's_load_dwordx2 s[4:5], s[0:1], {KA_WQKV}')
    P(f's_load_dwordx4 s[8:11], s[0:1], {KA_WG}')
    P(f's_load_dwordx2 s[6:7], s[0:1], {KA_WS}')
    P(f'v_and_b32 v{V_LANE}, 63, v0')
    P('v_lshrrev_b32 v0, 6, v0')
    P('v_readfirstlane_b32 s3, v0')
    P('s_and_b32 s62, s2, 7')
    P('s_lshr_b32 s63, s2, 3')
    P('s_lshr_b32 s64, s62, 2')
    P('s_and_b32 s65, s62, 3')
    P('s_lshr_b32 s66, s63, 2')
    P('s_and_b32 s67, s63, 3')
    P('s_lshl_b32 s68, s64, 3')
    P('s_add_u32 s68, s68, s66')
    P(f's_lshr_b32 s{S_TYPE}, s67, 1')
    P('s_and_b32 s69, s3, 1')
    P('s_lshr_b32 s70, s3, 1')
    P(f's_lshl_b32 s{S_LDSW}, s3, 12')
    P('s_lshl_b32 s71, s68, 7')
    P('s_lshl_b32 s72, s3, 5')
    P('s_add_u32 s72, s72, s71')
    P(f's_mul_i32 s{S_XO}, s72, 1280')
    L = V_LANE
    P(f'v_lshrrev_b32 v40, 3, v{L}')
    P(f'v_and_b32 v41, 7, v{L}')
    P('v_lshrrev_b32 v42, 1, v40')
    P('v_xor_b32 v41, v41, v42')
    P('v_mul_u32_u24 v40, 1280, v40')
    P(f'v_lshl_add_u32 v{V_DX}, v41, 4, v40')
    P(f'v_xor_b32 v41, 4, v41')
    P(f'v_lshl_add_u32 v{V_DX+1}, v41, 4, v40')
    P(f'v_add_u32 v{V_DX+1}, {10240-1024}, v{V_DX+1}')
    P(f'v_add_u32 v{V_DX+2}, {2*(10240-1024)}, v{V_DX}')
    P(f'v_add_u32 v{V_DX+3}, {2*(10240-1024)}, v{V_DX+1}')
    P(f'v_bfe_u32 v{V_R8}, v{L}, 2, 3')
    P(f'v_lshrrev_b32 v40, 5, v{L}')
    P(f'v_and_b32 v41, 3, v{L}')
    P('v_lshlrev_b32 v41, 4, v41')
    P(f'v_lshl_add_u32 v{V_CB}, v40, 6, v41')
    ev = [0, 1, 2, 10, 11, 20, 21, 22]; od = [3, 4, 12, 13, 14, 23, 24, 200]
    pk = lambda l: sum(v << (8 * i) for i, v in enumerate(l))
    P('s_bitcmp1_b32 s65, 0')
    P(f's_mov_b32 s74, {hex(pk(ev[:4]))}'); P(f's_mov_b32 s75, {hex(pk(ev[4:]))}')
    P(f's_cselect_b32 s74, {hex(pk(od[:4]))}, s74'); P(f's_cselect_b32 s75, {hex(pk(od[4:]))}, s75')
    P('s_lshr_b32 s76, s65, 1')
    P('s_mul_i32 s76, s76, 5')
    P('s_mul_i32 s77, s67, 3')
    P('s_sub_u32 s77, s77, 2')
    P(f's_cmp_eq_u32 s{S_TYPE}, 0')
    P('s_cselect_b32 s77, s67, s77')
    def chunk(dst, idxreg, delta):
        P(f's_add_u32 s78, s{idxreg}, {delta}' if delta >= 0 else f's_sub_u32 s78, s{idxreg}, {-delta}')
        P('s_and_b32 s78, s78, 7')
        P('s_lshl_b32 s78, s78, 3')
        P('s_lshr_b64 s[80:81], s[74:75], s78')
        P(f's_and_b32 s{dst}, s80, 0xff')
        P(f's_add_u32 s{dst}, s{dst}, s76')
    chunk(82, 77, -2); chunk(83, 77, -1); chunk(84, 77, 0)
    P(f's_mov_b32 s{S_R3}, s84')
    P('s_mul_i32 s85, s65, 6')
    P('s_lshl_b32 s86, s67, 1')
    P('s_add_u32 s86, s86, s85')
    P('s_add_u32 s87, s86, 1')
    P('s_add_u32 s88, s85, s67')
    P('s_add_u32 s88, s88, 2')
    P(f's_cmp_eq_u32 s{S_TYPE}, 0')
    P('s_cselect_b32 s87, s87, s88')
    P('s_waitcnt lgkmcnt(0)')
    srd(P, S_X, 6, S * D * 2, WS_XN)
    P('s_cmp_eq_u32 s70, 0')
    P(f's_cselect_b32 s{S_W[1]}, s8, s10')
    P(f's_cselect_b32 s{S_W[1]+1}, s9, s11')
    P(f's_mov_b32 s{S_W[1]+2}, {D*DF*2}')
    P(f's_mov_b32 s{S_W[1]+3}, 0x20000')
    P('s_cselect_b32 s89, s82, s83')
    srd(P, S_W[2], 4, D * 3 * D * 2)
    P(f's_cmp_eq_u32 s{S_TYPE}, 0')
    P(f's_cselect_b32 s{S_W[0]}, s{S_W[1]}, s4')
    P(f's_cselect_b32 s{S_W[0]+1}, s{S_W[1]+1}, s5')
    P(f's_cselect_b32 s{S_W[0]+2}, s{S_W[1]+2}, s{S_W[2]+2}')
    P(f's_mov_b32 s{S_W[0]+3}, 0x20000')
    P(f's_movk_i32 s{S_PITCH[1]}, 3072')
    P(f's_movk_i32 s{S_PITCH[2]}, 3840')
    P(f's_cselect_b32 s{S_PITCH[0]}, s{S_PITCH[1]}, s{S_PITCH[2]}')
    P('s_cselect_b32 s89, s86, s89')
    P(f's_lshl_b32 s{S_WSTEP[0]}, s{S_PITCH[0]}, 6')
    P(f's_lshl_b32 s{S_WSTEP[1]}, s{S_PITCH[1]}, 6')
    P(f's_lshl_b32 s{S_WSTEP[2]}, s{S_PITCH[2]}, 7')
    P('s_lshl_b32 s90, s69, 5')
    for r, ch in ((0, 89), (1, 87)):
        P(f's_mul_i32 s{S_WO[r]}, s90, s{S_PITCH[r]}')
        P(f's_lshl_b32 s91, s{ch}, 7')
        P(f's_add_u32 s{S_WO[r]}, s{S_WO[r]}, s91')
    P(f's_mul_i32 s{S_WO[2]}, s3, {32*3840}')
    P('s_lshl_b32 s91, s84, 7')
    P(f's_add_u32 s{S_WO[2]}, s{S_WO[2]}, s91')
    g = G1(P)
    for t in g.wdma_setup(0): P(t)
    g.queue_loads(NSLOT, 35)
    g.flush_dma()
    srd(P, S_Q, 6, 480 * 16384, WS_QKV)
    srd(P, S_H, 6, 32 * ACT_TB, WS_ACT)
    P(f'v_lshrrev_b32 v40, 5, v{L}')
    P(f'v_lshlrev_b32 v{V_TR}, 10, v40')
    P(f'v_bfe_u32 v41, v{L}, 2, 2')
    P(f'v_lshl_add_u32 v{V_TR}, v41, 6, v{V_TR}')
    P(f'v_bfe_u32 v41, v{L}, 4, 1')
    P(f'v_lshl_add_u32 v{V_TR}, v41, 5, v{V_TR}')
    P(f'v_and_b32 v41, 3, v{L}')
    P(f'v_lshl_add_u32 v{V_TR}, v41, 3, v{V_TR}')
    P('s_lshl_b32 s91, s70, 9')
    P(f'v_add_u32 v{V_TR}, s91, v{V_TR}')
    P(f'v_add_u32 v{V_TR+1}, 0x10000, v{V_TR}')
    P(f'v_add_u32 v{V_TR+2}, 0x20000, v{V_TR}')
    P(f'v_and_b32 v41, 31, v{L}')
    P('v_bfe_u32 v42, v41, 1, 3')
    P('v_xor_b32 v42, v42, v40')
    P('v_lshlrev_b32 v42, 4, v42')
    P(f'v_lshl_add_u32 v{V_XA}, v41, 7, v42')
    P('s_lshl_b32 s91, s69, 13')
    P(f'v_add_u32 v{V_XA}, s91, v{V_XA}')
    for j in range(1, 4): P(f'v_xor_b32 v{V_XA+j}, {32*j}, v{V_XA}')
    for b in range(1, 3):
        for j in range(4): P(f'v_add_u32 v{V_XA+4*b+j}, {hex(0x10000*b)}, v{V_XA+j}')
    P(f'v_lshlrev_b32 v{V_STQ}, 14, v40')
    P(f'v_lshl_add_u32 v{V_STQ}, v41, 3, v{V_STQ}')
    P(f'v_lshlrev_b32 v{V_STH}, 10, v40')
    P(f'v_lshl_add_u32 v{V_STH}, v41, 4, v{V_STH}')
    P(f'v_mov_b32 v{V_C0}, {hex(f2u(GC0))}')
    P(f'v_mov_b32 v{V_C1}, {hex(f2u(GC1))}')
    P('s_lshl_b32 s91, s69, 6')
    P('s_add_u32 s91, s91, s71')
    P('s_lshl_b32 s92, s91, 3')
    P('s_lshl_b32 s93, s70, 17')
    P('s_add_u32 s92, s92, s93')
    for i, ch in enumerate((82, 83, 84)):
        P(f's_lshl_b32 s{S_QO[i]}, s{ch}, 18')
        P(f's_add_u32 s{S_QO[i]}, s{S_QO[i]}, s92')
        P(f's_cmp_lt_u32 s{ch}, 10')
        P(f's_cselect_b32 s{S_QS[i]}, {hex(f2u(QSCALE))}, 1.0')
    P('s_lshr_b32 s92, s91, 6')
    P(f's_mul_i32 s92, s92, {ACT_TB}')
    P('s_lshl_b32 s93, s70, 12')
    P('s_add_u32 s92, s92, s93')
    for i, ch in enumerate((86, 87)):
        P(f's_lshl_b32 s{S_HO[i]}, s{ch}, 13')
        P(f's_add_u32 s{S_HO[i]}, s{S_HO[i]}, s92')
    g.enter_stage(0, 35)
    for fi in range(AH):
        for t in g.x_reads_for(fi) + g.tr_reads(fi): P(t)
    left = g.run(0, 80, 200, [], 35)
    P(f's_cmp_eq_u32 s{S_TYPE}, 0')
    P('s_cbranch_scc0 L_k1_B')
    snap = P.snapshot(); gs = (g.issued, list(g.dmaq), g.wround)
    for typ in ('A', 'B'):
        if typ == 'B':
            P.label('L_k1_B')
            P.restore(snap); g.issued, g.dmaq, g.wround = gs[0], list(gs[1]), gs[2]
            fill = epi_q(ACC[0], S_QO[0], S_QS[0]) + epi_q(ACC[0] + 32, S_QO[1], S_QS[1])
        else:
            fill = epi_gu(ACC[0], S_HO[0])
        left = g.run(80, 160, 200, fill, 35)
        assert not left, len(left)
        left = g.run(160, 200, 200, epi_gu(ACC[1], S_HO[1]), 35)
        for t in left: P(t)
        if typ == 'B':
            P(f's_cmp_ge_u32 s{S_R3}, 30')
            P('s_cbranch_scc1 L_k1_end')
        for t in epi_q(ACC[0], S_QO[2], S_QS[2]): P(t)
        P('s_endpgm')
    P.label('L_k1_end')
    P('s_endpgm')
    print('k1 counts', P.count, 'nops', P.nops)
    return kernel('k1_kernel', P, 512, 256, sgpr=100)
```

```python
from common import *

PL = 4128
NEGBIG = 0xF149F2CA
V_L, V_H, V_T31 = 1, 2, 3
V_K16, V_K4, V_V = 4, 5, 6
V_ST, V_ST2 = 7, 8
V_TMP = 10
V_Q = [20, 26]
V_KF = [32, 38]
V_VF = [44, 52, 60]
V_P = [68, 76]
V_S = [84, 100]
V_O = [116, 132]
V_MO, V_MD = 148, 164
NV = 180

def items():
    it = [(0, 0, 'O'), (1, 0, None), (1, 1, 'O')]
    for kt in range(2, 8): it += [(kt, 0, None), (kt, 1, None)]
    it += [(8, 0, 'D'), (8, 1, None), (9, 1, 'D')]
    return it

def k_reads(kt):
    r = V_KF[kt % 2]
    return [f'ds_read_b64 v[{r}:{r+1}], v{V_K16} offset:{kt*256}',
            f'ds_read_b64 v[{r+2}:{r+3}], v{V_K16} offset:{kt*256 + PL}',
            f'ds_read_b64 v[{r+4}:{r+5}], v{V_K4} offset:{kt*256}']
def v_reads(kt):
    r = V_VF[kt % 3]
    return [f'ds_read_b64_tr_b16 v[{r+2*i}:{r+2*i+1}], v{V_V} offset:{kt*256 + 64*i}' for i in range(4)]
def qk(n, it):
    kt, q, m = it
    s = V_S[n % 2]; k = V_KF[kt % 2]; Q = V_Q[q]
    c = '0' if m is None else (f'v[{V_MO}:{V_MO+15}]' if m == 'O' else f'v[{V_MD}:{V_MD+15}]')
    return [f'v_mfma_f32_32x32x16_bf16 v[{s}:{s+15}], v[{k}:{k+3}], v[{Q}:{Q+3}], {c}',
            f'v_mfma_f32_32x32x8_bf16 v[{s}:{s+15}], v[{k+4}:{k+5}], v[{Q+4}:{Q+5}], v[{s}:{s+15}]']
def pv(n, it, first):
    kt, q, m = it
    o = V_O[q]; v = V_VF[kt % 3]; p = V_P[n % 2]
    L = []
    for c in range(2):
        cc = '0' if (first and c == 0) else f'v[{o}:{o+15}]'
        L.append(f'v_mfma_f32_32x32x16_bf16 v[{o}:{o+15}], v[{v+4*c}:{v+4*c+3}], v[{p+4*c}:{p+4*c+3}], {cc}')
    return L

def attn_main(P):
    IT = items()
    N = len(IT)
    for t in k_reads(0) + k_reads(1) + v_reads(0): P(t)
    for t in qk(0, IT[0]): P(t)
    kread = 2; vread = 1
    seen = set()
    for n in range(N + 1):
        mf = []
        if n + 1 < N: mf += qk(n + 1, IT[n + 1])
        else: mf += [None, None]
        if n >= 1:
            q = IT[n - 1][1]
            mf += pv(n - 1, IT[n - 1], q not in seen); seen.add(q)
        else: mf += [None, None]
        rd = []
        if n + 2 < N and IT[n + 2][0] >= kread:
            rd_k = k_reads(kread); kread += 1
        else: rd_k = []
        if n + 1 < N and IT[n + 1][0] >= vread:
            rd_v = v_reads(vread); vread += 1
        else: rd_v = []
        if n == N:
            for t in mf:
                if t: P(t)
            break
        s = V_S[n % 2]; p = V_P[n % 2]
        for g in range(4):
            if mf[g]: P(mf[g])
            if g == 2:
                for t in rd_k: P(t)
            if g == 0:
                for t in rd_v: P(t)
            for i in range(4): P(f'v_exp_f32 v{s+4*g+i}, v{s+4*g+i}')
            if g >= 1:
                for i in range(2): P(f'v_cvt_pk_bf16_f32 v{p+2*(g-1)+i}, v{s+4*(g-1)+2*i}, v{s+4*(g-1)+2*i+1}')
        for i in range(2): P(f'v_cvt_pk_bf16_f32 v{p+6+i}, v{s+12+2*i}, v{s+12+2*i+1}')

def gen_k2():
    P = Prog()
    P('s_cmp_ge_u32 s2, 256')
    P('s_cbranch_scc1 L_k2_end')
    P(f's_load_dwordx2 s[6:7], s[0:1], {KA_WS}')
    P(f'v_and_b32 v{V_L}, 63, v0')
    P('v_lshrrev_b32 v10, 6, v0')
    P('v_readfirstlane_b32 s3, v10')
    P('s_and_b32 s40, s2, 7')
    P('s_lshr_b32 s41, s2, 3')
    P('s_lshr_b32 s42, s40, 2')
    P('s_and_b32 s43, s40, 3')
    P('s_and_b32 s44, s41, 7')
    P('s_lshl_b32 s45, s43, 3')
    P('s_add_u32 s44, s44, s45')
    P('s_lshr_b32 s45, s41, 3')
    P('s_lshl_b32 s46, s42, 2')
    P('s_add_u32 s45, s45, s46')
    P('s_lshl_b32 s46, s45, 8')
    P('s_lshl_b32 s47, s3, 7')
    P('s_add_u32 s47, s47, s46')
    P('s_sub_u32 s47, s47, 256')
    P('s_cmp_lt_i32 s47, 0')
    P('s_cselect_b32 s52, 0xf149, 0')
    P('s_max_i32 s47, s47, 0')
    P('s_lshl_b32 s47, s47, 3')
    P('s_mul_i32 s48, s44, 81920')
    P('s_add_u32 s49, s48, s47')
    P(f's_add_u32 s50, s49, {160*16384}')
    P(f's_add_u32 s49, s49, {320*16384}')
    P('s_lshl_b32 s51, s3, 10')
    P(f'v_lshlrev_b32 v11, 4, v{V_L}')
    srd(P, 16, 6, 480 * 16384, WS_QKV)
    for j in range(5):
        P(f's_add_u32 m0, s51, {(6+j)*PL}')
        P('buffer_load_dwordx4 v11, s[16:19], s50 offen lds', ('kv',))
        P('s_add_u32 s50, s50, 16384')
    P(f'v_lshrrev_b32 v{V_H}, 5, v{V_L}')
    P(f'v_and_b32 v{V_T31}, 31, v{V_L}')
    P(f'v_lshlrev_b32 v12, 3, v{V_T31}')
    P(f'v_lshl_add_u32 v13, v{V_H}, 15, v12')
    P('s_lshl_b32 s53, s3, 6')
    P('s_add_u32 s53, s53, s46')
    P('s_lshl_b32 s54, s53, 3')
    P('s_add_u32 s54, s54, s48')
    P('s_add_u32 s55, s54, 16384')
    P('s_add_u32 s56, s54, 65536')
    for q in range(2):
        Q = V_Q[q]
        P(f'buffer_load_dwordx2 v[{Q}:{Q+1}], v13, s[16:19], s54 offen offset:{256*q}')
        P(f'buffer_load_dwordx2 v[{Q+2}:{Q+3}], v13, s[16:19], s55 offen offset:{256*q}')
        P(f'buffer_load_dwordx2 v[{Q+4}:{Q+5}], v12, s[16:19], s56 offen offset:{256*q}')
    for j in range(5):
        P(f's_add_u32 m0, s51, {j*PL}')
        P('buffer_load_dwordx4 v11, s[16:19], s49 offen lds', ('kv',))
        P('s_add_u32 s49, s49, 16384')
    P('s_or_b32 s52, s52, 0x3f800000')
    P('v_mov_b32 v14, s52'); P('v_mov_b32 v15, 0x3f803f80'); P('v_mov_b32 v16, s52'); P('v_mov_b32 v17, 0x3f803f80')
    P('v_lshlrev_b32 v18, 4, v0')
    P(f'ds_write_b128 v18, v[14:17] offset:{5*PL}')
    P('s_lshl_b32 s57, s3, 9')
    P(f'v_mul_u32_u24 v14, {2*PL}, v{V_H}')
    P(f'v_add3_u32 v{V_K16}, v14, v12, s57')
    P(f'v_add_u32 v{V_K16}, {6*PL}, v{V_K16}')
    P(f'v_mul_u32_u24 v14, {5*PL}, v{V_H}')
    P(f'v_sub_u32 v14, {10*PL}, v14')
    P(f'v_add3_u32 v{V_K4}, v14, v12, s57')
    P(f'v_and_b32 v14, 3, v{V_L}')
    P('v_min_u32 v15, 1, v14')
    P('v_add_u32 v15, 4, v15')
    P(f'v_bfe_u32 v16, v{V_L}, 4, 1')
    P('v_sub_u32 v15, v15, v14')
    P('v_mad_u32_u24 v14, v15, v16, v14')
    P(f'v_mul_u32_u24 v14, {PL}, v14')
    P(f'v_bfe_u32 v15, v{V_L}, 2, 2')
    P(f'v_lshl_add_u32 v15, v{V_H}, 2, v15')
    P('v_lshl_add_u32 v14, v15, 3, v14')
    P(f'v_add_u32 v{V_V}, s57, v14')
    P(f'v_lshlrev_b32 v14, 2, v{V_H}')
    P(f'v_sub_u32 v14, v{V_T31}, v14')
    P(f's_mov_b32 s58, {hex(NEGBIG)}')
    for r in range(16):
        kr = 8 * (r >> 2) + (r & 3)
        P(f'v_subrev_u32 v15, {kr}, v14')
        P('v_ashrrev_i32 v15, 31, v15')
        P(f'v_and_b32 v{V_MD+r}, s58, v15')
        P(f'v_xor_b32 v{V_MO+r}, s58, v{V_MD+r}')
    srd(P, 20, 6, 32 * ACT_TB, WS_ACT)
    P(f'v_lshlrev_b32 v{V_ST2}, 4, v{V_T31}')
    P(f'v_lshl_add_u32 v{V_ST}, v{V_H}, 10, v{V_ST2}')
    P('s_lshr_b32 s59, s53, 6')
    P(f's_mul_i32 s59, s59, {ACT_TB}')
    P('s_lshl_b32 s60, s44, 11')
    P('s_add_u32 s60, s60, s59')
    P(f's_add_u32 s60, s60, {192*1024}')
    P('s_lshr_b32 s61, s44, 1')
    P('s_lshl_b32 s61, s61, 10')
    P('s_add_u32 s61, s61, s59')
    P('s_and_b32 s62, s44, 1')
    P('s_lshl_b32 s62, s62, 3')
    P('s_add_u32 s61, s61, s62')
    P(f's_add_u32 s61, s61, {256*1024}')
    P('s_mov_b32 s63, 0')
    P('s_waitcnt vmcnt(0) lgkmcnt(0)')
    P('s_mov_b32 exec_lo, 0')
    for q in range(2):
        P(f'v_mov_b32 v{V_Q[q]+4}, 0x3f80')
        P(f'v_mov_b32 v{V_Q[q]+5}, 0')
    P('s_mov_b32 exec_lo, -1')
    P('s_barrier')
    P.label('L_k2_main')
    P('s_nop 1')
    attn_main(P)
    P('s_cmp_lg_u32 s63, 0')
    P('s_cbranch_scc1 L_k2_fin')
    P(f's_mov_b32 s64, {hex(f2u(2.0**-30))}')
    P(f's_mov_b32 s65, {hex(f2u(2.0**30))}')
    for q in range(2):
        o = V_O[q]
        P(f'v_fma_f32 v{10+q}, v{o}, 0, v{o+13}')
        for i in range(1, 12): P(f'v_fma_f32 v{10+q}, v{o+i}, 0, v{10+q}')
    P('v_cmp_le_f32 s[66:67], s64, v10')
    P('v_cmp_ge_f32 s[68:69], s65, v10')
    P('v_cmp_le_f32 s[70:71], s64, v11')
    P('v_cmp_ge_f32 s[72:73], s65, v11')
    P('s_and_b64 s[66:67], s[66:67], s[68:69]')
    P('s_and_b64 s[70:71], s[70:71], s[72:73]')
    P('s_and_b64 s[66:67], s[66:67], s[70:71]')
    P('s_cmp_eq_u64 s[66:67], -1')
    P('s_cbranch_scc0 L_k2_slow')
    P.label('L_k2_fin')
    P('s_nop 7'); P('s_nop 3')
    for q in range(2):
        o = V_O[q]
        P(f'v_rcp_f32 v10, v{o+13}')
        for i in range(12): P(f'v_mul_f32 v{o+i}, v{o+i}, v10')
        for i in range(6): P(f'v_cvt_pk_bf16_f32 v{o+i}, v{o+2*i}, v{o+2*i+1}')
        P(f'buffer_store_dwordx4 v[{o}:{o+3}], v{V_ST}, s[20:23], s60 offen offset:{512*q}')
    P('s_mov_b32 exec_hi, 0')
    for q in range(2):
        o = V_O[q]
        P(f'buffer_store_dwordx2 v[{o+4}:{o+5}], v{V_ST2}, s[20:23], s61 offen offset:{512*q}')
    P.label('L_k2_end')
    P('s_endpgm')
    P.label('L_k2_slow')
    P.vmq = []; P.lgq = []
    P('s_mov_b32 s63, 1')
    P(f'v_mov_b32 v10, s58'); P(f'v_mov_b32 v11, s58')
    last = -1
    for n, it in enumerate(items()):
        if it[0] != last:
            for t in k_reads(it[0]): P(t)
            last = it[0]
        for t in qk(n, it): P(t)
        s = V_S[n % 2]; m = 10 + it[1]
        for i in range(8): P(f'v_max3_f32 v{m}, v{s+2*i}, v{s+2*i+1}, v{m}')
    for q in range(2):
        m = 10 + q
        P(f'v_mov_b32 v12, v{m}')
        P(f'v_permlane32_swap_b32 v12, v{m}')
        P(f'v_max_f32 v{m}, v12, v{m}')
        P(f'v_sub_f32 v{m}, 0, v{m}')
        P(f'v_and_b32 v12, 0xffff0000, v{m}')
        P(f'v_sub_f32 v13, v{m}, v12')
        P('v_and_b32 v14, 0xffff0000, v13')
        P('v_sub_f32 v13, v13, v14')
        P('v_and_b32 v13, 0xffff0000, v13')
        P('v_lshrrev_b32 v14, 16, v14')
        P('s_mov_b32 exec_lo, 0')
        P(f'v_or_b32 v{V_Q[q]+4}, 0x3f80, v12')
        P(f'v_or_b32 v{V_Q[q]+5}, v14, v13')
        P('s_mov_b32 exec_lo, -1')
    P('s_branch L_k2_main')
    print('k2 counts', P.count, 'nops', P.nops)
    return kernel('k2_kernel', P, NV, NV)
```

```python
from common import *

V_L = 1
V_A = 2
V_W = 6
V_XO = 7
V_LW = 8
V_LR = 11
V_XR = 12
V_RD = 24
ACC = 96
NB = 7

def gen_k3():
    P = Prog()
    P('s_cmp_ge_u32 s2, 256')
    P('s_cbranch_scc1 L_k3_end')
    P(f's_load_dwordx2 s[4:5], s[0:1], {KA_X}')
    P(f's_load_dwordx2 s[6:7], s[0:1], {KA_WS}')
    P(f's_load_dwordx2 s[8:9], s[0:1], {KA_OUT}')
    P(f'v_and_b32 v{V_L}, 63, v0')
    P('v_lshrrev_b32 v24, 6, v0')
    P('v_readfirstlane_b32 s3, v24')
    P('s_and_b32 s40, s2, 7')
    P('s_lshr_b32 s41, s2, 3')
    P('s_lshr_b32 s42, s40, 1')
    P('s_and_b32 s43, s40, 1')
    P('s_lshr_b32 s44, s41, 2')
    P('s_lshl_b32 s42, s42, 3')
    P('s_add_u32 s44, s44, s42')
    P('s_and_b32 s45, s41, 3')
    P('s_lshl_b32 s43, s43, 2')
    P('s_add_u32 s45, s45, s43')
    P('s_mul_i32 s46, s3, 17')
    P(f's_mul_i32 s47, s44, {ACT_TB}')
    P('s_lshl_b32 s48, s46, 12')
    P('s_add_u32 s47, s47, s48')
    P('s_mul_i32 s48, s45, 68')
    P('s_add_u32 s48, s48, s46')
    P('s_mul_i32 s48, s48, 5120')
    P('s_add_u32 s49, s48, 4096')
    P(f'v_lshlrev_b32 v{V_W}, 4, v{V_L}')
    P(f'v_lshrrev_b32 v24, 4, v{V_L}')
    P(f'v_and_b32 v25, 15, v{V_L}')
    P('v_lshlrev_b32 v26, 4, v25')
    P(f'v_lshl_add_u32 v{V_A}, v24, 10, v26')
    P('s_lshl_b32 s50, s3, 8')
    P(f'v_add_u32 v{V_A}, s50, v{V_A}')
    for u in range(1, 4): P(f'v_xor_b32 v{V_A+u}, {256*u}, v{V_A}')
    srd(P, 16, 6, 32 * ACT_TB, WS_ACT)
    srd(P, 20, 6, 2720 * 1024, WS_W2P)
    def wl(i, nt):
        r = (i % NB) * 36 + nt * 4
        if nt < 4: return f'buffer_load_dwordx4 a[{r}:{r+3}], v{V_W}, s[20:23], s48 offen offset:{nt*1024}'
        return f'buffer_load_dwordx4 a[{r}:{r+3}], v{V_W}, s[20:23], s49 offen'
    def al(i, u):
        r = (i % NB) * 36 + 20 + u * 4
        return f'buffer_load_dwordx4 a[{r}:{r+3}], v{V_A+u}, s[16:19], s47 offen'
    def adv():
        P('s_add_u32 s47, s47, 4096'); P('s_add_u32 s48, s48, 5120'); P('s_add_u32 s49, s49, 5120')
    for i in range(NB - 1):
        for u in range(4): P(al(i, u))
        for nt in range(5): P(wl(i, nt))
        adv()
    srd(P, 24, 4, S * D * 2)
    srd(P, 28, 8, S * D * 2)
    P('v_mul_u32_u24 v26, 1280, v25')
    P(f'v_lshl_add_u32 v{V_XO}, v24, 3, v26')
    P('s_lshl_b32 s51, s44, 2')
    P('s_add_u32 s51, s51, s3')
    P(f's_mul_i32 s51, s51, {16*1280}')
    P('s_mul_i32 s52, s45, 160')
    P('s_add_u32 s51, s51, s52')
    for nt in range(5):
        P(f'buffer_load_dwordx2 v[{V_XR+2*nt}:{V_XR+2*nt+1}], v{V_XO}, s[24:27], s51 offen offset:{32*nt}')
    for u in range(1, 4):
        P(f's_xor_b32 s53, s3, {u}')
        P('s_mul_i32 s53, s53, 15360')
        P(f's_add_u32 s53, s53, {(u-1)*5120}')
        P(f'v_add_u32 v{V_LW+u-1}, s53, v{V_W}')
    P('s_mul_i32 s53, s3, 15360')
    P(f'v_add_u32 v{V_LR}, s53, v{V_W}')
    for i in range(17):
        nxt = i + NB - 1
        ld = []
        if nxt < 17: ld = [al(nxt, u) for u in range(4)] + [wl(nxt, nt) for nt in range(5)]
        b = (i % NB) * 36
        k = 0
        for nt in range(5):
            for u in range(4):
                a = ACC + (u * 5 + nt) * 4
                c = '0' if i == 0 else f'v[{a}:{a+3}]'
                P(f'v_mfma_f32_16x16x32_bf16 v[{a}:{a+3}], a[{b+nt*4}:{b+nt*4+3}], a[{b+20+u*4}:{b+20+u*4+3}], {c}')
                k += 1
                if k % 2 == 0 and ld: P(ld.pop(0))
        if nxt < 17: adv()
    for u in range(1, 4):
        for nt in range(5):
            a = ACC + (u * 5 + nt) * 4
            P(f'ds_write_b128 v{V_LW+u-1}, v[{a}:{a+3}] offset:{nt*1024}')
    P('s_waitcnt lgkmcnt(0)')
    P('s_barrier')
    for nt in range(5):
        for u in range(3):
            r = V_RD + (nt * 3 + u) * 4
            P(f'ds_read_b128 v[{r}:{r+3}], v{V_LR} offset:{u*5120 + nt*1024}')
    for nt in range(5):
        a = ACC + nt * 4
        x = V_XR + 2 * nt
        P(f'v_lshlrev_b32 v84, 16, v{x}'); P(f'v_and_b32 v85, 0xffff0000, v{x}')
        P(f'v_lshlrev_b32 v86, 16, v{x+1}'); P(f'v_and_b32 v87, 0xffff0000, v{x+1}')
        for i in range(4): P(f'v_add_f32 v{a+i}, v{a+i}, v{84+i}')
        for u in range(3):
            r = V_RD + (nt * 3 + u) * 4
            for i in range(4): P(f'v_add_f32 v{a+i}, v{a+i}, v{r+i}')
        P(f'v_cvt_pk_bf16_f32 v{a}, v{a}, v{a+1}')
        P(f'v_cvt_pk_bf16_f32 v{a+1}, v{a+2}, v{a+3}')
        P(f'buffer_store_dwordx2 v[{a}:{a+1}], v{V_XO}, s[28:31], s51 offen offset:{32*nt}')
    P.label('L_k3_end')
    P('s_endpgm')
    print('k3 counts', P.count, 'nops', P.nops)
    return kernel('k3_kernel', P, 176 + 256, 176)
```

```python
import sys
from k0 import gen_k0
from k1 import gen_k1
from k2 import gen_k2
from k3 import gen_k3
head = """; parallel_sum(sliding-window attention block, GeGLU FFN) : generated by gen/gen_v1.py
; @launch kernel=k0_kernel grid=(256,1,1) block=(256,1,1) lds=0
; @launch kernel=k1_kernel grid=(256,1,1) block=(256,1,1) lds=163840
; @launch kernel=k2_kernel grid=(256,1,1) block=(256,1,1) lds=45568
; @launch kernel=k3_kernel grid=(256,1,1) block=(256,1,1) lds=61440
.amdgcn_target "amdgcn-amd-amdhsa--gfx950"
"""
out = sys.argv[1] if len(sys.argv) > 1 else 'parallel_sum__sliding_block__glu_gated_geglu__prompt.s'
open(out, 'w').write(head + gen_k0() + gen_k1() + gen_k2() + gen_k3())
```

```python
import struct, math
from asmb import *

S, D, DF, H, DH = 2048, 640, 1536, 32, 20
WS_XN   = 0
WS_QKV  = 0x300000
WS_ACT  = 0xB00000
WS_W2P  = 0x1400000
WS_END  = 0x1700000
ACT_TB  = 272 * 1024

def f2u(x): return struct.unpack('<I', struct.pack('<f', x))[0]
LOG2E = 1.4426950408889634
QSCALE = LOG2E / math.sqrt(20.0)
K0 = math.sqrt(2.0 / math.pi)
GC0 = -2.0 * K0 * LOG2E
GC1 = GC0 * 0.044715

KA_X, KA_WQKV, KA_WO, KA_BX, KA_WG, KA_WU, KA_WD, KA_OUT, KA_DBG, KA_WS = [8 * i for i in range(10)]

def srd(P, d, base, nbytes, off=0):
    if off:
        P(f's_add_u32 s{d}, s{base}, {hex(off)}')
        P(f's_addc_u32 s{d+1}, s{base+1}, 0')
    else:
        P(f's_mov_b32 s{d}, s{base}')
        P(f's_mov_b32 s{d+1}, s{base+1}')
    P(f's_mov_b32 s{d+2}, {hex(nbytes)}')
    P(f's_mov_b32 s{d+3}, 0x20000')

def wave_sum(P, v, t):
    for m in ('quad_perm:[1,0,3,2]', 'quad_perm:[2,3,0,1]', 'row_half_mirror', 'row_mirror'):
        P(f'v_add_f32_dpp v{v}, v{v}, v{v} {m} row_mask:0xf bank_mask:0xf')
    for sw in ('v_permlane16_swap_b32', 'v_permlane32_swap_b32'):
        P(f'v_mov_b32 v{t}, v{v}')
        P(f'{sw} v{t}, v{v}')
        P(f'v_add_f32 v{v}, v{t}, v{v}')

WS_DBG = 0x1800000
import os
PROF = bool(int(os.environ.get('PROF', '0')))
class Stamps:
    def __init__(self, P, base, first=94, kidx=0):
        self.P, self.base, self.n, self.first, self.kidx = P, base, 0, first, kidx
    def start(self):
        if not PROF: return
        self.P(f's_memtime s[{self.first}:{self.first+1}]')
        self.P(f's_memrealtime s[{self.first+2}:{self.first+3}]')
    def stamp(self, i=None):
        if not PROF: return
        if i is None: i = self.n
        r = self.base + 2 * i
        self.P(f's_memtime s[{r}:{r+1}]')
        self.n = max(self.n, i + 1)
    def dump(self, wsptr, wave_s, v0=40, sr=98):
        if not PROF: return
        P = self.P
        P('s_waitcnt vmcnt(0)')
        self.stamp()
        P(f's_memrealtime s[{sr}:{sr+1}]')
        P('s_waitcnt lgkmcnt(0)')
        P('s_mov_b64 exec, 1')
        P(f's_lshl_b32 s{sr+1}, s2, 2')
        P(f's_add_u32 s{sr+1}, s{sr+1}, s{wave_s}')
        P(f's_lshl_b32 s{sr+1}, s{sr+1}, 7')
        P(f's_add_u32 s{sr+1}, s{sr+1}, {hex(WS_DBG + self.kidx * 0x20000)}')
        P(f'v_mov_b32 v{v0}, s{sr+1}')
        vals = [self.first + 2, sr] + [self.base + 2 * i for i in range(self.n)]
        for j, r in enumerate(vals):
            if j >= 2: P(f's_sub_u32 s{r}, s{r}, s{self.first}')
            P(f'v_mov_b32 v{v0+1}, s{r}')
            P(f'global_store_dword v{v0}, v{v0+1}, s[{wsptr}:{wsptr+1}] offset:{4*j}')
        P('s_waitcnt vmcnt(0)')
```

```python
from common import *

V_TR = 1
V_DW = 4
V_STQ = 8
V_STH = 9
V_C0, V_C1 = 10, 11
V_T = 12
V_PK = 20
V_LANE = 36
V_R8 = 37
V_CB = 38
V_WF = 48
ACC = [64, 128]
V_X2 = 192
V_XA = 128
V_DX = 140

S_X, S_W, S_Q, S_H = 16, [20, 24, 28], 32, 36
S_XO = 40
S_WO = [41, 42, 43]
S_WSTEP = [44, 45, 46]
S_LDSW = 47
S_PITCH = [48, 49, 50]
S_QO = [51, 52, 53]
S_QS = [54, 55, 56]
S_HO = [57, 58]
S_TYPE, S_R3 = 59, 60
S_TMP = 61

def xreg(ks, sub):
    if ks < 32:
        r = ks * 8 + sub * 4
        return f'a[{r}:{r+3}]'
    r = V_X2 + (ks - 32) * 8 + sub * 4
    return f'v[{r}:{r+3}]'

def epi_gu(acc, so):
    L = []
    pk = 0
    for sub in range(2):
        g = acc + sub * 16; u = acc + 32 + sub * 16
        for blk in range(2):
            q = V_PK + 4 * (pk % 4); pk += 1
            for half in range(2):
                rs = [blk * 8 + half * 4 + i for i in range(4)]
                T = [V_T + 4 * half + i for i in range(4)]
                for r, t in zip(rs, T): L.append(f'v_mul_f32 v{t}, v{g+r}, v{g+r}')
                for r, t in zip(rs, T): L.append(f'v_fma_f32 v{t}, v{t}, v{V_C1}, v{V_C0}')
                for r, t in zip(rs, T): L.append(f'v_mul_f32 v{t}, v{t}, v{g+r}')
                for r, t in zip(rs, T):
                    L.append(f'v_exp_f32 v{t}, v{t}')
                    L.append(f'v_mul_f32 v{u+r}, v{g+r}, v{u+r}')
                for r, t in zip(rs, T): L.append(f'v_add_f32 v{t}, 1.0, v{t}')
                for r, t in zip(rs, T): L.append(f'v_rcp_f32 v{t}, v{t}')
                for r, t in zip(rs, T): L.append(f'v_mul_f32 v{u+r}, v{u+r}, v{t}')
                L.append(f'v_cvt_pk_bf16_f32 v{q+2*half}, v{u+rs[0]}, v{u+rs[1]}')
                L.append(f'v_cvt_pk_bf16_f32 v{q+2*half+1}, v{u+rs[2]}, v{u+rs[3]}')
            L.append(f'buffer_store_dwordx4 v[{q}:{q+3}], v{V_STH}, s[{S_H}:{S_H+3}], s{so} offen offset:{sub*512 + blk*2048}')
    return L

def epi_q(acc, so, sc):
    L = []
    pk = 0
    for q4 in range(4):
        if q4: L.append(f's_add_u32 s{so}, s{so}, 0x8000')
        for sub in range(2):
            a = acc + sub * 16 + q4 * 4
            q = V_PK + 2 * (pk % 8); pk += 1
            for i in range(4): L.append(f'v_mul_f32 v{a+i}, s{sc}, v{a+i}')
            L.append(f'v_cvt_pk_bf16_f32 v{q}, v{a}, v{a+1}')
            L.append(f'v_cvt_pk_bf16_f32 v{q+1}, v{a+2}, v{a+3}')
            L.append(f'buffer_store_dwordx2 v[{q}:{q+1}], v{V_STQ}, s[{S_Q}:{S_Q+3}], s{so} offen offset:{sub*256}')
    return L

def cost(t):
    op = t.split()[0]
    return 2 if op in TRANS else 1

NSLOT = 10
AH = 2
class G1:
    def __init__(self, P):
        self.P = P
        self.stages = []
        self.frags = []
        self.loads = []
        for s in range(10):
            lx = len(self.loads); self.loads.append(dict(kind='x', rnd=0))
            lw = len(self.loads); self.loads.append(dict(kind='w', rnd=0))
            self._stage(0, [lx, lw], [(lw, b * 8192 + j * 2048, 4 * s + j, b) for j in range(4) for b in range(2)], lx)
        for s in range(10):
            lw = len(self.loads); self.loads.append(dict(kind='w', rnd=1))
            self._stage(1, [lw], [(lw, b * 8192 + j * 2048, 4 * s + j, b) for j in range(4) for b in range(2)], None)
        for q in range(5):
            lw = len(self.loads); self.loads.append(dict(kind='w', rnd=2))
            self._stage(2, [lw], [(lw, j * 2048, 8 * q + j, 0) for j in range(8)], None)
        self.issued = 0
        self.dmaq = []
        self.wround = 0
    def _stage(self, rnd, loads, fr, lx):
        t = len(self.stages)
        self.stages.append(dict(rnd=rnd, loads=loads, first=len(self.frags)))
        for (l, off, ks, b) in fr:
            self.frags.append(dict(stage=t, load=l, off=off, ks=ks, b=b, rnd=rnd, lx=lx))
    def wdma_setup(self, rnd):
        L = [f'v_mul_u32_u24 v{V_DW}, s{S_PITCH[rnd]}, v{V_R8}', f'v_add_u32 v{V_DW}, v{V_DW}, v{V_CB}',
             f's_lshl_b32 s{S_TMP}, s{S_PITCH[rnd]}, 3', f's_sub_u32 s{S_TMP}, s{S_TMP}, 1024']
        for j in range(1, 4): L.append(f'v_add_u32 v{V_DW+j}, s{S_TMP}, v{V_DW+j-1}')
        return L
    def load_groups(self, i):
        ld = self.loads[i]
        slot = (i % NSLOT) * 16384
        G = []
        pre = []
        if ld['kind'] == 'w' and ld['rnd'] != self.wround:
            self.wround = ld['rnd']
            G.append([(t, None) for t in self.wdma_setup(ld['rnd'])])
        pre.append((f's_add_u32 m0, s{S_LDSW}, {slot}', None))
        for j in range(4):
            if ld['kind'] == 'x':
                t = f'buffer_load_dwordx4 v{V_DX+j}, s[{S_X}:{S_X+3}], s{S_XO} offen offset:{j*1024} lds'
            else:
                r = ld['rnd']
                t = f'buffer_load_dwordx4 v{V_DW+j}, s[{S_W[r]}:{S_W[r]+3}], s{S_WO[r]} offen offset:{j*1024} lds'
            g = pre + [(t, ('L', i))]
            pre = []
            if j == 3:
                if ld['kind'] == 'x': g.append((f's_add_u32 s{S_XO}, s{S_XO}, 128', None))
                else: g.append((f's_add_u32 s{S_WO[ld["rnd"]]}, s{S_WO[ld["rnd"]]}, s{S_WSTEP[ld["rnd"]]}', None))
            G.append(g)
        return G
    def queue_loads(self, upto, maxload):
        while self.issued < min(upto, maxload):
            self.dmaq += self.load_groups(self.issued)
            self.issued += 1
    def flush_dma(self):
        for g in self.dmaq:
            for t, tok in g: self.P(t, tok)
        self.dmaq = []
    def tr_reads(self, fi):
        f = self.frags[fi]
        a = (f['load'] % NSLOT) * 16384 + f['off']
        r = V_WF + 4 * (fi % 4)
        return [f'ds_read_b64_tr_b16 v[{r+2*h}:{r+2*h+1}], v{V_TR + a // 65536} offset:{a % 65536 + 256*h}' for h in range(2)]
    def x_read(self, fi):
        f = self.frags[fi]
        if f['lx'] is None: return None
        a = (f['lx'] % NSLOT) * 16384
        sub = f['b']
        return a
    def x_reads_for(self, fi):
        f = self.frags[fi]
        if f['lx'] is None or f['b'] != 0: return []
        a = (f['lx'] % NSLOT) * 16384
        j = f['ks'] % 4
        return [f'ds_read_b128 {xreg(f["ks"], sub)}, v{V_XA + (a // 65536) * 4 + j} offset:{a % 65536 + sub * 4096}' for sub in range(2)]
    def enter_stage(self, t, maxload):
        P = self.P
        st = self.stages[t]
        assert self.issued > max(st['loads'])
        if any(tok is not None and tok[1] in st['loads'] for g in self.dmaq for (_, tok) in g):
            self.flush_dma()
        P.wait_tok(lambda k: k[0] == 'L' and k[1] <= max(st['loads']))
        P('s_barrier')
        if t >= 1:
            self.queue_loads(self.stages[t - 1]['loads'][0] + NSLOT, maxload)
    def reads_for(self, fi, nfr, maxload):
        return self.x_reads_for(fi), self.tr_reads(fi)
    def run(self, f0, f1, fend, fill, maxload, budget=6, delay=3):
        P = self.P
        fill = list(fill)
        for fi in range(f0, f1):
            f = self.frags[fi]
            nx = fi + AH
            xr, tr = [], []
            bar = False
            if nx < fend:
                if self.stages[self.frags[nx]['stage']]['first'] == nx: bar = True
                xr, tr = self.x_reads_for(nx), self.tr_reads(nx)
            w = V_WF + 4 * (fi % 4)
            accb = ACC[f['rnd'] % 2] + f['b'] * 32
            for sub in range(2):
                a = accb + sub * 16
                c = '0' if f['ks'] == 0 else f'v[{a}:{a+15}]'
                P(f'v_mfma_f32_32x32x16_bf16 v[{a}:{a+15}], v[{w}:{w+3}], {xreg(f["ks"], sub)}, {c}')
                used = 1 if sub == 1 else 0
                if sub == 0 and bar:
                    self.enter_stage(self.frags[nx]['stage'], maxload); used += 3
                if tr:
                    P(tr[sub]); used += 1
                if xr:
                    P(xr[sub]); used += 1
                if self.dmaq and not (sub == 0 and bar):
                    g = self.dmaq.pop(0)
                    for t, tok in g: P(t, tok)
                    used += len(g) + 1
                if fi - f0 >= delay:
                    while fill and used + cost(fill[0]) <= budget:
                        t = fill.pop(0); P(t); used += cost(t)
        return fill

def gen_k1():
    P = Prog()
    P('s_cmp_ge_u32 s2, 256')
    P('s_cbranch_scc1 L_k1_end')
    ST = Stamps(P, 62, kidx=1); ST.start()
    P(f's_load_dwordx2 s[4:5], s[0:1], {KA_WQKV}')
    P(f's_load_dwordx4 s[8:11], s[0:1], {KA_WG}')
    P(f's_load_dwordx2 s[6:7], s[0:1], {KA_WS}')
    P(f'v_and_b32 v{V_LANE}, 63, v0')
    P('v_lshrrev_b32 v0, 6, v0')
    P('v_readfirstlane_b32 s3, v0')
    P('s_and_b32 s62, s2, 7')
    P('s_lshr_b32 s63, s2, 3')
    P('s_lshr_b32 s64, s62, 2')
    P('s_and_b32 s65, s62, 3')
    P('s_lshr_b32 s66, s63, 2')
    P('s_and_b32 s67, s63, 3')
    P('s_lshl_b32 s68, s64, 3')
    P('s_add_u32 s68, s68, s66')
    P(f's_lshr_b32 s{S_TYPE}, s67, 1')
    P('s_and_b32 s69, s3, 1')
    P('s_lshr_b32 s70, s3, 1')
    P(f's_lshl_b32 s{S_LDSW}, s3, 12')
    P('s_lshl_b32 s71, s68, 7')
    P('s_lshl_b32 s72, s3, 5')
    P('s_add_u32 s72, s72, s71')
    P(f's_mul_i32 s{S_XO}, s72, 1280')
    L = V_LANE
    P(f'v_lshrrev_b32 v40, 3, v{L}')
    P(f'v_and_b32 v41, 7, v{L}')
    P('v_lshrrev_b32 v42, 1, v40')
    P('v_xor_b32 v41, v41, v42')
    P('v_mul_u32_u24 v40, 1280, v40')
    P(f'v_lshl_add_u32 v{V_DX}, v41, 4, v40')
    P(f'v_xor_b32 v41, 4, v41')
    P(f'v_lshl_add_u32 v{V_DX+1}, v41, 4, v40')
    P(f'v_add_u32 v{V_DX+1}, {10240-1024}, v{V_DX+1}')
    P(f'v_add_u32 v{V_DX+2}, {2*(10240-1024)}, v{V_DX}')
    P(f'v_add_u32 v{V_DX+3}, {2*(10240-1024)}, v{V_DX+1}')
    P(f'v_bfe_u32 v{V_R8}, v{L}, 2, 3')
    P(f'v_lshrrev_b32 v40, 5, v{L}')
    P(f'v_and_b32 v41, 3, v{L}')
    P('v_lshlrev_b32 v41, 4, v41')
    P(f'v_lshl_add_u32 v{V_CB}, v40, 6, v41')
    ev = [0, 1, 2, 10, 11, 20, 21, 22]; od = [3, 4, 12, 13, 14, 23, 24, 200]
    pk = lambda l: sum(v << (8 * i) for i, v in enumerate(l))
    P('s_bitcmp1_b32 s65, 0')
    P(f's_mov_b32 s74, {hex(pk(ev[:4]))}'); P(f's_mov_b32 s75, {hex(pk(ev[4:]))}')
    P(f's_cselect_b32 s74, {hex(pk(od[:4]))}, s74'); P(f's_cselect_b32 s75, {hex(pk(od[4:]))}, s75')
    P('s_lshr_b32 s76, s65, 1')
    P('s_mul_i32 s76, s76, 5')
    P('s_mul_i32 s77, s67, 3')
    P('s_sub_u32 s77, s77, 2')
    P(f's_cmp_eq_u32 s{S_TYPE}, 0')
    P('s_cselect_b32 s77, s67, s77')
    def chunk(dst, idxreg, delta):
        P(f's_add_u32 s78, s{idxreg}, {delta}' if delta >= 0 else f's_sub_u32 s78, s{idxreg}, {-delta}')
        P('s_and_b32 s78, s78, 7')
        P('s_lshl_b32 s78, s78, 3')
        P('s_lshr_b64 s[80:81], s[74:75], s78')
        P(f's_and_b32 s{dst}, s80, 0xff')
        P(f's_add_u32 s{dst}, s{dst}, s76')
    chunk(82, 77, -2); chunk(83, 77, -1); chunk(84, 77, 0)
    P(f's_mov_b32 s{S_R3}, s84')
    P('s_mul_i32 s85, s65, 6')
    P('s_lshl_b32 s86, s67, 1')
    P('s_add_u32 s86, s86, s85')
    P('s_add_u32 s87, s86, 1')
    P('s_add_u32 s88, s85, s67')
    P('s_add_u32 s88, s88, 2')
    P(f's_cmp_eq_u32 s{S_TYPE}, 0')
    P('s_cselect_b32 s87, s87, s88')
    P('s_waitcnt lgkmcnt(0)')
    srd(P, S_X, 6, S * D * 2, WS_XN)
    P('s_cmp_eq_u32 s70, 0')
    P(f's_cselect_b32 s{S_W[1]}, s8, s10')
    P(f's_cselect_b32 s{S_W[1]+1}, s9, s11')
    P(f's_mov_b32 s{S_W[1]+2}, {D*DF*2}')
    P(f's_mov_b32 s{S_W[1]+3}, 0x20000')
    P('s_cselect_b32 s89, s82, s83')
    srd(P, S_W[2], 4, D * 3 * D * 2)
    P(f's_cmp_eq_u32 s{S_TYPE}, 0')
    P(f's_cselect_b32 s{S_W[0]}, s{S_W[1]}, s4')
    P(f's_cselect_b32 s{S_W[0]+1}, s{S_W[1]+1}, s5')
    P(f's_cselect_b32 s{S_W[0]+2}, s{S_W[1]+2}, s{S_W[2]+2}')
    P(f's_mov_b32 s{S_W[0]+3}, 0x20000')
    P(f's_movk_i32 s{S_PITCH[1]}, 3072')
    P(f's_movk_i32 s{S_PITCH[2]}, 3840')
    P(f's_cselect_b32 s{S_PITCH[0]}, s{S_PITCH[1]}, s{S_PITCH[2]}')
    P('s_cselect_b32 s89, s86, s89')
    P(f's_lshl_b32 s{S_WSTEP[0]}, s{S_PITCH[0]}, 6')
    P(f's_lshl_b32 s{S_WSTEP[1]}, s{S_PITCH[1]}, 6')
    P(f's_lshl_b32 s{S_WSTEP[2]}, s{S_PITCH[2]}, 7')
    P('s_lshl_b32 s90, s69, 5')
    for r, ch in ((0, 89), (1, 87)):
        P(f's_mul_i32 s{S_WO[r]}, s90, s{S_PITCH[r]}')
        P(f's_lshl_b32 s91, s{ch}, 7')
        P(f's_add_u32 s{S_WO[r]}, s{S_WO[r]}, s91')
    P(f's_mul_i32 s{S_WO[2]}, s3, {32*3840}')
    P('s_lshl_b32 s91, s84, 7')
    P(f's_add_u32 s{S_WO[2]}, s{S_WO[2]}, s91')
    g = G1(P)
    for t in g.wdma_setup(0): P(t)
    g.queue_loads(NSLOT, 35)
    g.flush_dma()
    srd(P, S_Q, 6, 480 * 16384, WS_QKV)
    srd(P, S_H, 6, 32 * ACT_TB, WS_ACT)
    P(f'v_lshrrev_b32 v40, 5, v{L}')
    P(f'v_lshlrev_b32 v{V_TR}, 10, v40')
    P(f'v_bfe_u32 v41, v{L}, 2, 2')
    P(f'v_lshl_add_u32 v{V_TR}, v41, 6, v{V_TR}')
    P(f'v_bfe_u32 v41, v{L}, 4, 1')
    P(f'v_lshl_add_u32 v{V_TR}, v41, 5, v{V_TR}')
    P(f'v_and_b32 v41, 3, v{L}')
    P(f'v_lshl_add_u32 v{V_TR}, v41, 3, v{V_TR}')
    P('s_lshl_b32 s91, s70, 9')
    P(f'v_add_u32 v{V_TR}, s91, v{V_TR}')
    P(f'v_add_u32 v{V_TR+1}, 0x10000, v{V_TR}')
    P(f'v_add_u32 v{V_TR+2}, 0x20000, v{V_TR}')
    P(f'v_and_b32 v41, 31, v{L}')
    P('v_bfe_u32 v42, v41, 1, 3')
    P('v_xor_b32 v42, v42, v40')
    P('v_lshlrev_b32 v42, 4, v42')
    P(f'v_lshl_add_u32 v{V_XA}, v41, 7, v42')
    P('s_lshl_b32 s91, s69, 13')
    P(f'v_add_u32 v{V_XA}, s91, v{V_XA}')
    for j in range(1, 4): P(f'v_xor_b32 v{V_XA+j}, {32*j}, v{V_XA}')
    for b in range(1, 3):
        for j in range(4): P(f'v_add_u32 v{V_XA+4*b+j}, {hex(0x10000*b)}, v{V_XA+j}')
    P(f'v_lshlrev_b32 v{V_STQ}, 14, v40')
    P(f'v_lshl_add_u32 v{V_STQ}, v41, 3, v{V_STQ}')
    P(f'v_lshlrev_b32 v{V_STH}, 10, v40')
    P(f'v_lshl_add_u32 v{V_STH}, v41, 4, v{V_STH}')
    P(f'v_mov_b32 v{V_C0}, {hex(f2u(GC0))}')
    P(f'v_mov_b32 v{V_C1}, {hex(f2u(GC1))}')
    P('s_lshl_b32 s91, s69, 6')
    P('s_add_u32 s91, s91, s71')
    P('s_lshl_b32 s92, s91, 3')
    P('s_lshl_b32 s93, s70, 17')
    P('s_add_u32 s92, s92, s93')
    for i, ch in enumerate((82, 83, 84)):
        P(f's_lshl_b32 s{S_QO[i]}, s{ch}, 18')
        P(f's_add_u32 s{S_QO[i]}, s{S_QO[i]}, s92')
        P(f's_cmp_lt_u32 s{ch}, 10')
        P(f's_cselect_b32 s{S_QS[i]}, {hex(f2u(QSCALE))}, 1.0')
    P('s_lshr_b32 s92, s91, 6')
    P(f's_mul_i32 s92, s92, {ACT_TB}')
    P('s_lshl_b32 s93, s70, 12')
    P('s_add_u32 s92, s92, s93')
    for i, ch in enumerate((86, 87)):
        P(f's_lshl_b32 s{S_HO[i]}, s{ch}, 13')
        P(f's_add_u32 s{S_HO[i]}, s{S_HO[i]}, s92')
    ST.stamp(0)
    g.enter_stage(0, 35)
    ST.stamp(1)
    for fi in range(AH):
        for t in g.x_reads_for(fi) + g.tr_reads(fi): P(t)
    for q in range(5):
        left = g.run(16*q, 16*q+16, 200, [], 35)
        ST.stamp(2+q)
    P(f's_cmp_eq_u32 s{S_TYPE}, 0')
    P('s_cbranch_scc0 L_k1_B')
    snap = P.snapshot(); gs = (g.issued, list(g.dmaq), g.wround)
    for typ in ('A', 'B'):
        if typ == 'B':
            P.label('L_k1_B')
            P.restore(snap); g.issued, g.dmaq, g.wround = gs[0], list(gs[1]), gs[2]
            fill = epi_q(ACC[0], S_QO[0], S_QS[0]) + epi_q(ACC[0] + 32, S_QO[1], S_QS[1])
        else:
            fill = epi_gu(ACC[0], S_HO[0])
        left = g.run(80, 120, 200, fill, 35)
        ST.stamp(7)
        left = g.run(120, 160, 200, left, 35, delay=0)
        ST.stamp(8)
        assert not left, len(left)
        left = g.run(160, 200, 200, epi_gu(ACC[1], S_HO[1]), 35)
        ST.stamp(9)
        for t in left: P(t)
        ST.stamp(10)
        if typ == 'B':
            P(f's_cmp_ge_u32 s{S_R3}, 30')
            P('s_cbranch_scc1 L_k1_endB')
        for t in epi_q(ACC[0], S_QO[2], S_QS[2]): P(t)
        if typ == 'B': P.label('L_k1_endB')
        ST.stamp(11)
        ST.n = 12
        ST.dump(6, 3)
        P('s_endpgm')
    P.label('L_k1_end')
    P('s_endpgm')
    print('k1 counts', P.count, 'nops', P.nops)
    return kernel('k1_kernel', P, 512, 256, sgpr=102)
```

```python
from common import *

PL = 4128
NEGBIG = 0xF149F2CA
V_L, V_H, V_T31 = 1, 2, 3
V_K16, V_K4, V_V = 4, 5, 6
V_ST, V_ST2 = 7, 8
V_TMP = 10
V_Q = [20, 26]
V_KF = [32, 38]
V_VF = [44, 52, 60]
V_P = [68, 76]
V_S = [84, 100]
V_O = [116, 132]
V_MO, V_MD = 148, 164
NV = 180

def items():
    it = [(0, 0, 'O'), (1, 0, None), (1, 1, 'O')]
    for kt in range(2, 8): it += [(kt, 0, None), (kt, 1, None)]
    it += [(8, 0, 'D'), (8, 1, None), (9, 1, 'D')]
    return it

def k_reads(kt):
    r = V_KF[kt % 2]
    return [f'ds_read_b64 v[{r}:{r+1}], v{V_K16} offset:{kt*256}',
            f'ds_read_b64 v[{r+2}:{r+3}], v{V_K16} offset:{kt*256 + PL}',
            f'ds_read_b64 v[{r+4}:{r+5}], v{V_K4} offset:{kt*256}']
def v_reads(kt):
    r = V_VF[kt % 3]
    return [f'ds_read_b64_tr_b16 v[{r+2*i}:{r+2*i+1}], v{V_V} offset:{kt*256 + 64*i}' for i in range(4)]
def qk(n, it):
    kt, q, m = it
    s = V_S[n % 2]; k = V_KF[kt % 2]; Q = V_Q[q]
    c = '0' if m is None else (f'v[{V_MO}:{V_MO+15}]' if m == 'O' else f'v[{V_MD}:{V_MD+15}]')
    return [f'v_mfma_f32_32x32x16_bf16 v[{s}:{s+15}], v[{k}:{k+3}], v[{Q}:{Q+3}], {c}',
            f'v_mfma_f32_32x32x8_bf16 v[{s}:{s+15}], v[{k+4}:{k+5}], v[{Q+4}:{Q+5}], v[{s}:{s+15}]']
def pv(n, it, first):
    kt, q, m = it
    o = V_O[q]; v = V_VF[kt % 3]; p = V_P[n % 2]
    L = []
    for c in range(2):
        cc = '0' if (first and c == 0) else f'v[{o}:{o+15}]'
        L.append(f'v_mfma_f32_32x32x16_bf16 v[{o}:{o+15}], v[{v+4*c}:{v+4*c+3}], v[{p+4*c}:{p+4*c+3}], {cc}')
    return L

def attn_main(P):
    IT = items()
    N = len(IT)
    for t in k_reads(0) + k_reads(1) + v_reads(0): P(t)
    for t in qk(0, IT[0]): P(t)
    kread = 2; vread = 1
    seen = set()
    for n in range(N + 1):
        mf = []
        if n + 1 < N: mf += qk(n + 1, IT[n + 1])
        else: mf += [None, None]
        if n >= 1:
            q = IT[n - 1][1]
            mf += pv(n - 1, IT[n - 1], q not in seen); seen.add(q)
        else: mf += [None, None]
        rd = []
        if n + 2 < N and IT[n + 2][0] >= kread:
            rd_k = k_reads(kread); kread += 1
        else: rd_k = []
        if n + 1 < N and IT[n + 1][0] >= vread:
            rd_v = v_reads(vread); vread += 1
        else: rd_v = []
        if n == N:
            for t in mf:
                if t: P(t)
            break
        s = V_S[n % 2]; p = V_P[n % 2]
        for g in range(4):
            if mf[g]: P(mf[g])
            if g == 2:
                for t in rd_k: P(t)
            if g == 0:
                for t in rd_v: P(t)
            for i in range(4): P(f'v_exp_f32 v{s+4*g+i}, v{s+4*g+i}')
            if g >= 1:
                for i in range(2): P(f'v_cvt_pk_bf16_f32 v{p+2*(g-1)+i}, v{s+4*(g-1)+2*i}, v{s+4*(g-1)+2*i+1}')
        for i in range(2): P(f'v_cvt_pk_bf16_f32 v{p+6+i}, v{s+12+2*i}, v{s+12+2*i+1}')

def gen_k2():
    P = Prog()
    P('s_cmp_ge_u32 s2, 256')
    P('s_cbranch_scc1 L_k2_end')
    ST = Stamps(P, 76, kidx=2); ST.start()
    P(f's_load_dwordx2 s[6:7], s[0:1], {KA_WS}')
    P(f'v_and_b32 v{V_L}, 63, v0')
    P('v_lshrrev_b32 v10, 6, v0')
    P('v_readfirstlane_b32 s3, v10')
    P('s_and_b32 s40, s2, 7')
    P('s_lshr_b32 s41, s2, 3')
    P('s_lshr_b32 s42, s40, 2')
    P('s_and_b32 s43, s40, 3')
    P('s_and_b32 s44, s41, 7')
    P('s_lshl_b32 s45, s43, 3')
    P('s_add_u32 s44, s44, s45')
    P('s_lshr_b32 s45, s41, 3')
    P('s_lshl_b32 s46, s42, 2')
    P('s_add_u32 s45, s45, s46')
    P('s_lshl_b32 s46, s45, 8')
    P('s_lshl_b32 s47, s3, 7')
    P('s_add_u32 s47, s47, s46')
    P('s_sub_u32 s47, s47, 256')
    P('s_cmp_lt_i32 s47, 0')
    P('s_cselect_b32 s52, 0xf149, 0')
    P('s_max_i32 s47, s47, 0')
    P('s_lshl_b32 s47, s47, 3')
    P('s_mul_i32 s48, s44, 81920')
    P('s_add_u32 s49, s48, s47')
    P(f's_add_u32 s50, s49, {160*16384}')
    P(f's_add_u32 s49, s49, {320*16384}')
    P('s_lshl_b32 s51, s3, 10')
    P(f'v_lshlrev_b32 v11, 4, v{V_L}')
    srd(P, 16, 6, 480 * 16384, WS_QKV)
    for j in range(5):
        P(f's_add_u32 m0, s51, {(6+j)*PL}')
        P('buffer_load_dwordx4 v11, s[16:19], s50 offen lds', ('kv',))
        P('s_add_u32 s50, s50, 16384')
    P(f'v_lshrrev_b32 v{V_H}, 5, v{V_L}')
    P(f'v_and_b32 v{V_T31}, 31, v{V_L}')
    P(f'v_lshlrev_b32 v12, 3, v{V_T31}')
    P(f'v_lshl_add_u32 v13, v{V_H}, 15, v12')
    P('s_lshl_b32 s53, s3, 6')
    P('s_add_u32 s53, s53, s46')
    P('s_lshl_b32 s54, s53, 3')
    P('s_add_u32 s54, s54, s48')
    P('s_add_u32 s55, s54, 16384')
    P('s_add_u32 s56, s54, 65536')
    for q in range(2):
        Q = V_Q[q]
        P(f'buffer_load_dwordx2 v[{Q}:{Q+1}], v13, s[16:19], s54 offen offset:{256*q}')
        P(f'buffer_load_dwordx2 v[{Q+2}:{Q+3}], v13, s[16:19], s55 offen offset:{256*q}')
        P(f'buffer_load_dwordx2 v[{Q+4}:{Q+5}], v12, s[16:19], s56 offen offset:{256*q}')
    for j in range(5):
        P(f's_add_u32 m0, s51, {j*PL}')
        P('buffer_load_dwordx4 v11, s[16:19], s49 offen lds', ('kv',))
        P('s_add_u32 s49, s49, 16384')
    P('s_or_b32 s52, s52, 0x3f800000')
    P('v_mov_b32 v14, s52'); P('v_mov_b32 v15, 0x3f803f80'); P('v_mov_b32 v16, s52'); P('v_mov_b32 v17, 0x3f803f80')
    P('v_lshlrev_b32 v18, 4, v0')
    P(f'ds_write_b128 v18, v[14:17] offset:{5*PL}')
    P('s_lshl_b32 s57, s3, 9')
    P(f'v_mul_u32_u24 v14, {2*PL}, v{V_H}')
    P(f'v_add3_u32 v{V_K16}, v14, v12, s57')
    P(f'v_add_u32 v{V_K16}, {6*PL}, v{V_K16}')
    P(f'v_mul_u32_u24 v14, {5*PL}, v{V_H}')
    P(f'v_sub_u32 v14, {10*PL}, v14')
    P(f'v_add3_u32 v{V_K4}, v14, v12, s57')
    P(f'v_and_b32 v14, 3, v{V_L}')
    P('v_min_u32 v15, 1, v14')
    P('v_add_u32 v15, 4, v15')
    P(f'v_bfe_u32 v16, v{V_L}, 4, 1')
    P('v_sub_u32 v15, v15, v14')
    P('v_mad_u32_u24 v14, v15, v16, v14')
    P(f'v_mul_u32_u24 v14, {PL}, v14')
    P(f'v_bfe_u32 v15, v{V_L}, 2, 2')
    P(f'v_lshl_add_u32 v15, v{V_H}, 2, v15')
    P('v_lshl_add_u32 v14, v15, 3, v14')
    P(f'v_add_u32 v{V_V}, s57, v14')
    P(f'v_lshlrev_b32 v14, 2, v{V_H}')
    P(f'v_sub_u32 v14, v{V_T31}, v14')
    P(f's_mov_b32 s58, {hex(NEGBIG)}')
    for r in range(16):
        kr = 8 * (r >> 2) + (r & 3)
        P(f'v_subrev_u32 v15, {kr}, v14')
        P('v_ashrrev_i32 v15, 31, v15')
        P(f'v_and_b32 v{V_MD+r}, s58, v15')
        P(f'v_xor_b32 v{V_MO+r}, s58, v{V_MD+r}')
    srd(P, 20, 6, 32 * ACT_TB, WS_ACT)
    P(f'v_lshlrev_b32 v{V_ST2}, 4, v{V_T31}')
    P(f'v_lshl_add_u32 v{V_ST}, v{V_H}, 10, v{V_ST2}')
    P('s_lshr_b32 s59, s53, 6')
    P(f's_mul_i32 s59, s59, {ACT_TB}')
    P('s_lshl_b32 s60, s44, 11')
    P('s_add_u32 s60, s60, s59')
    P(f's_add_u32 s60, s60, {192*1024}')
    P('s_lshr_b32 s61, s44, 1')
    P('s_lshl_b32 s61, s61, 10')
    P('s_add_u32 s61, s61, s59')
    P('s_and_b32 s62, s44, 1')
    P('s_lshl_b32 s62, s62, 3')
    P('s_add_u32 s61, s61, s62')
    P(f's_add_u32 s61, s61, {256*1024}')
    P('s_mov_b32 s63, 0')
    ST.stamp()
    P('s_waitcnt vmcnt(0) lgkmcnt(0)')
    P('s_mov_b32 exec_lo, 0')
    for q in range(2):
        P(f'v_mov_b32 v{V_Q[q]+4}, 0x3f80')
        P(f'v_mov_b32 v{V_Q[q]+5}, 0')
    P('s_mov_b32 exec_lo, -1')
    P('s_barrier')
    ST.stamp()
    P('s_waitcnt lgkmcnt(0)')
    P.label('L_k2_main')
    P('s_nop 1')
    attn_main(P)
    ST.stamp()
    P('s_cmp_lg_u32 s63, 0')
    P('s_cbranch_scc1 L_k2_fin')
    P(f's_mov_b32 s64, {hex(f2u(2.0**-30))}')
    P(f's_mov_b32 s65, {hex(f2u(2.0**30))}')
    for q in range(2):
        o = V_O[q]
        P(f'v_fma_f32 v{10+q}, v{o}, 0, v{o+13}')
        for i in range(1, 12): P(f'v_fma_f32 v{10+q}, v{o+i}, 0, v{10+q}')
    P('v_cmp_le_f32 s[66:67], s64, v10')
    P('v_cmp_ge_f32 s[68:69], s65, v10')
    P('v_cmp_le_f32 s[70:71], s64, v11')
    P('v_cmp_ge_f32 s[72:73], s65, v11')
    P('s_and_b64 s[66:67], s[66:67], s[68:69]')
    P('s_and_b64 s[70:71], s[70:71], s[72:73]')
    P('s_and_b64 s[66:67], s[66:67], s[70:71]')
    P('s_cmp_eq_u64 s[66:67], -1')
    P('s_cbranch_scc0 L_k2_slow')
    P.label('L_k2_fin')
    P('s_nop 7'); P('s_nop 3')
    for q in range(2):
        o = V_O[q]
        P(f'v_rcp_f32 v10, v{o+13}')
        for i in range(12): P(f'v_mul_f32 v{o+i}, v{o+i}, v10')
        for i in range(6): P(f'v_cvt_pk_bf16_f32 v{o+i}, v{o+2*i}, v{o+2*i+1}')
        P(f'buffer_store_dwordx4 v[{o}:{o+3}], v{V_ST}, s[20:23], s60 offen offset:{512*q}')
    P('s_mov_b32 exec_hi, 0')
    for q in range(2):
        o = V_O[q]
        P(f'buffer_store_dwordx2 v[{o+4}:{o+5}], v{V_ST2}, s[20:23], s61 offen offset:{512*q}')
    ST.stamp()
    ST.dump(6, 3)
    P.label('L_k2_end')
    P('s_endpgm')
    P.label('L_k2_slow')
    P.vmq = []; P.lgq = []
    P('s_mov_b32 s63, 1')
    P(f'v_mov_b32 v10, s58'); P(f'v_mov_b32 v11, s58')
    last = -1
    for n, it in enumerate(items()):
        if it[0] != last:
            for t in k_reads(it[0]): P(t)
            last = it[0]
        for t in qk(n, it): P(t)
        s = V_S[n % 2]; m = 10 + it[1]
        for i in range(8): P(f'v_max3_f32 v{m}, v{s+2*i}, v{s+2*i+1}, v{m}')
    for q in range(2):
        m = 10 + q
        P(f'v_mov_b32 v12, v{m}')
        P(f'v_permlane32_swap_b32 v12, v{m}')
        P(f'v_max_f32 v{m}, v12, v{m}')
        P(f'v_sub_f32 v{m}, 0, v{m}')
        P(f'v_and_b32 v12, 0xffff0000, v{m}')
        P(f'v_sub_f32 v13, v{m}, v12')
        P('v_and_b32 v14, 0xffff0000, v13')
        P('v_sub_f32 v13, v13, v14')
        P('v_and_b32 v13, 0xffff0000, v13')
        P('v_lshrrev_b32 v14, 16, v14')
        P('s_mov_b32 exec_lo, 0')
        P(f'v_or_b32 v{V_Q[q]+4}, 0x3f80, v12')
        P(f'v_or_b32 v{V_Q[q]+5}, v14, v13')
        P('s_mov_b32 exec_lo, -1')
    P('s_branch L_k2_main')
    print('k2 counts', P.count, 'nops', P.nops)
    return kernel('k2_kernel', P, NV, NV, sgpr=102)
```

```python
from common import *

V_L = 1
V_A = 2
V_W = 6
V_XO = 7
V_LW = 8
V_LR = 11
V_XR = 12
V_RD = 24
ACC = 96
NB = 7

def gen_k3():
    P = Prog()
    P('s_cmp_ge_u32 s2, 256')
    P('s_cbranch_scc1 L_k3_end')
    ST = Stamps(P, 56, kidx=3); ST.start()
    P(f's_load_dwordx2 s[4:5], s[0:1], {KA_X}')
    P(f's_load_dwordx2 s[6:7], s[0:1], {KA_WS}')
    P(f's_load_dwordx2 s[8:9], s[0:1], {KA_OUT}')
    P(f'v_and_b32 v{V_L}, 63, v0')
    P('v_lshrrev_b32 v24, 6, v0')
    P('v_readfirstlane_b32 s3, v24')
    P('s_and_b32 s40, s2, 7')
    P('s_lshr_b32 s41, s2, 3')
    P('s_lshr_b32 s42, s40, 1')
    P('s_and_b32 s43, s40, 1')
    P('s_lshr_b32 s44, s41, 2')
    P('s_lshl_b32 s42, s42, 3')
    P('s_add_u32 s44, s44, s42')
    P('s_and_b32 s45, s41, 3')
    P('s_lshl_b32 s43, s43, 2')
    P('s_add_u32 s45, s45, s43')
    P('s_mul_i32 s46, s3, 17')
    P(f's_mul_i32 s47, s44, {ACT_TB}')
    P('s_lshl_b32 s48, s46, 12')
    P('s_add_u32 s47, s47, s48')
    P('s_mul_i32 s48, s45, 68')
    P('s_add_u32 s48, s48, s46')
    P('s_mul_i32 s48, s48, 5120')
    P('s_add_u32 s49, s48, 4096')
    P(f'v_lshlrev_b32 v{V_W}, 4, v{V_L}')
    P(f'v_lshrrev_b32 v24, 4, v{V_L}')
    P(f'v_and_b32 v25, 15, v{V_L}')
    P('v_lshlrev_b32 v26, 4, v25')
    P(f'v_lshl_add_u32 v{V_A}, v24, 10, v26')
    P('s_lshl_b32 s50, s3, 8')
    P(f'v_add_u32 v{V_A}, s50, v{V_A}')
    for u in range(1, 4): P(f'v_xor_b32 v{V_A+u}, {256*u}, v{V_A}')
    srd(P, 16, 6, 32 * ACT_TB, WS_ACT)
    srd(P, 20, 6, 2720 * 1024, WS_W2P)
    def wl(i, nt):
        r = (i % NB) * 36 + nt * 4
        if nt < 4: return f'buffer_load_dwordx4 a[{r}:{r+3}], v{V_W}, s[20:23], s48 offen offset:{nt*1024}'
        return f'buffer_load_dwordx4 a[{r}:{r+3}], v{V_W}, s[20:23], s49 offen'
    def al(i, u):
        r = (i % NB) * 36 + 20 + u * 4
        return f'buffer_load_dwordx4 a[{r}:{r+3}], v{V_A+u}, s[16:19], s47 offen'
    def adv():
        P('s_add_u32 s47, s47, 4096'); P('s_add_u32 s48, s48, 5120'); P('s_add_u32 s49, s49, 5120')
    for i in range(NB - 1):
        for u in range(4): P(al(i, u))
        for nt in range(5): P(wl(i, nt))
        adv()
    srd(P, 24, 4, S * D * 2)
    srd(P, 28, 8, S * D * 2)
    P('v_mul_u32_u24 v26, 1280, v25')
    P(f'v_lshl_add_u32 v{V_XO}, v24, 3, v26')
    P('s_lshl_b32 s51, s44, 2')
    P('s_add_u32 s51, s51, s3')
    P(f's_mul_i32 s51, s51, {16*1280}')
    P('s_mul_i32 s52, s45, 160')
    P('s_add_u32 s51, s51, s52')
    for nt in range(5):
        P(f'buffer_load_dwordx2 v[{V_XR+2*nt}:{V_XR+2*nt+1}], v{V_XO}, s[24:27], s51 offen offset:{32*nt}')
    for u in range(1, 4):
        P(f's_xor_b32 s53, s3, {u}')
        P('s_mul_i32 s53, s53, 15360')
        P(f's_add_u32 s53, s53, {(u-1)*5120}')
        P(f'v_add_u32 v{V_LW+u-1}, s53, v{V_W}')
    P('s_mul_i32 s53, s3, 15360')
    P(f'v_add_u32 v{V_LR}, s53, v{V_W}')
    for i in range(17):
        if i % 2 == 0: ST.stamp()
        nxt = i + NB - 1
        ld = []
        if nxt < 17: ld = [al(nxt, u) for u in range(4)] + [wl(nxt, nt) for nt in range(5)]
        b = (i % NB) * 36
        k = 0
        for nt in range(5):
            for u in range(4):
                a = ACC + (u * 5 + nt) * 4
                c = '0' if i == 0 else f'v[{a}:{a+3}]'
                P(f'v_mfma_f32_16x16x32_bf16 v[{a}:{a+3}], a[{b+nt*4}:{b+nt*4+3}], a[{b+20+u*4}:{b+20+u*4+3}], {c}')
                k += 1
                if k % 2 == 0 and ld: P(ld.pop(0))
        if nxt < 17: adv()
    ST.stamp()
    for u in range(1, 4):
        for nt in range(5):
            a = ACC + (u * 5 + nt) * 4
            P(f'ds_write_b128 v{V_LW+u-1}, v[{a}:{a+3}] offset:{nt*1024}')
    P('s_waitcnt lgkmcnt(0)')
    P('s_barrier')
    ST.stamp()
    for nt in range(5):
        for u in range(3):
            r = V_RD + (nt * 3 + u) * 4
            P(f'ds_read_b128 v[{r}:{r+3}], v{V_LR} offset:{u*5120 + nt*1024}')
    for nt in range(5):
        a = ACC + nt * 4
        x = V_XR + 2 * nt
        P(f'v_lshlrev_b32 v84, 16, v{x}'); P(f'v_and_b32 v85, 0xffff0000, v{x}')
        P(f'v_lshlrev_b32 v86, 16, v{x+1}'); P(f'v_and_b32 v87, 0xffff0000, v{x+1}')
        for i in range(4): P(f'v_add_f32 v{a+i}, v{a+i}, v{84+i}')
        for u in range(3):
            r = V_RD + (nt * 3 + u) * 4
            for i in range(4): P(f'v_add_f32 v{a+i}, v{a+i}, v{r+i}')
        P(f'v_cvt_pk_bf16_f32 v{a}, v{a}, v{a+1}')
        P(f'v_cvt_pk_bf16_f32 v{a+1}, v{a+2}, v{a+3}')
        P(f'buffer_store_dwordx2 v[{a}:{a+1}], v{V_XO}, s[28:31], s51 offen offset:{32*nt}')
    ST.stamp()
    ST.dump(6, 3)
    P.label('L_k3_end')
    P('s_endpgm')
    print('k3 counts', P.count, 'nops', P.nops)
    return kernel('k3_kernel', P, 176 + 256, 176, sgpr=102)
```

```python
from mblib import *
ON_GPU = os.path.exists('/dev/kfd')
def mk(name, nx=0, nd=4, barrier=True, nvalu=0, ntrans=0, iters=200, ahead=2, nstage=4, vop2=True, dpos=0, m0mode=1, pats=None):
    P = 4096
    region = 2 << 20
    body = f"""
s_load_dwordx2 s[4:5], s[0:1], 0
s_load_dwordx2 s[6:7], s[0:1], 8
v_and_b32 v1, 63, v0
v_lshrrev_b32 v2, 6, v0
s_nop 1
v_readfirstlane_b32 s14, v2
v_lshrrev_b32 v5, 2, v1
v_and_b32 v5, 7, v5
v_mul_u32_u24 v5, {P}, v5
v_and_b32 v6, 3, v1
v_lshlrev_b32 v6, 4, v6
v_lshrrev_b32 v7, 5, v1
v_lshlrev_b32 v7, 6, v7
v_add3_u32 v10, v5, v6, v7
v_lshrrev_b32 v5, 5, v1
v_lshlrev_b32 v11, 10, v5
v_lshrrev_b32 v5, 2, v1
v_and_b32 v5, 3, v5
v_lshlrev_b32 v5, 6, v5
v_add_u32 v11, v11, v5
v_lshrrev_b32 v5, 4, v1
v_and_b32 v5, 1, v5
v_lshlrev_b32 v5, 5, v5
v_add_u32 v11, v11, v5
v_and_b32 v5, 3, v1
v_lshlrev_b32 v5, 3, v5
v_add_u32 v11, v11, v5
v_lshlrev_b32 v12, 4, v1
s_waitcnt lgkmcnt(0)
s_mov_b32 s8, s6
s_mov_b32 s9, s7
s_mov_b32 s10, {64<<20}
s_mov_b32 s11, 0x20000
s_lshr_b32 s26, s2, 3
s_mul_i32 s21, s26, {P*64}
s_and_b32 s21, s21, {region-1}
s_mul_i32 s27, s26, 5
s_add_u32 s27, s27, s14
s_mul_i32 s22, s27, 128
s_and_b32 s22, s22, {P-1}
s_lshl_b32 s15, s14, 13
s_add_u32 s21, s21, s22
s_mov_b32 s12, {iters}
s_add_u32 m0, s15, 65536
"""
    for i in range(16, 250): body += f"v_mov_b32 v{i}, 0\n"
    for i in range(0, 256): body += f"v_accvgpr_write_b32 a{i}, 0\n"
    body += f"""
s_barrier
s_memtime s[30:31]
s_waitcnt lgkmcnt(0)
L_{name}:
"""
    NF = 4
    V2 = lambda i: f"v_fmac_f32 v{232+i}, v{240+i}, v{240+i}\n"
    V3 = lambda i: f"v_fma_f32 v{232+i}, v{240+i}, v{240+i}, v{232+i}\n"
    TRN = lambda i: f"v_exp_f32 v{220+i}, v{225+i}\n"
    SAL = lambda i: f"s_add_u32 s40, s40, 1\n"
    for st in range(nstage):
        base = (st % 2) * 32768
        for f in range(8):
            fr = 160 + 4 * ((f + ahead) % NF)
            off = base + 16384 + ((f + ahead) % 8) * 1024
            f0 = 160 + 4 * (f % NF)
            pat = pats[f % len(pats)]
            for g in range(4):
                acc = 16 + 16 * (f % 4) + 4 * g
                xr = (st * 32 + (f // 4) * 16 + 4 * g) % 256
                body += f"v_mfma_f32_16x16x32_bf16 v[{acc}:{acc+3}], v[{f0}:{f0+3}], a[{xr}:{xr+3}], v[{acc}:{acc+3}]\n"
                if g == 0 and f == 8 - ahead and barrier:
                    body += f"s_waitcnt vmcnt({nd*2})\n s_barrier\n"
                    continue
                k = 0
                for ch in pat[g]:
                    k += 1
                    if ch == 'a': body += f"ds_read_b64_tr_b16 v[{fr}:{fr+1}], v11 offset:{off}\n"
                    if ch == 'b': body += f"ds_read_b64_tr_b16 v[{fr+2}:{fr+3}], v11 offset:{off+256}\n"
                    if ch == 'w': body += f"s_waitcnt lgkmcnt({2*(ahead-1) + (1 if nx else 0)})\n"
                    if ch == 'x':
                        xw = (st * 32 + 128 + f * 4) % 256
                        body += f"ds_read_b128 a[{xw}:{xw+3}], v12 offset:{base + f*1024}\n"
                    if ch == 'v': body += V2(k + 2 * (g % 2))
                    if ch == 'V': body += V3(k + 2 * (g % 2))
                    if ch == 't': body += TRN(g)
                    if ch == 's': body += SAL(0)
                    if ch == 'd': body += f"buffer_load_dwordx4 v10, s[8:11], s21 offen lds\n"
                    if ch == 'm': body += f"s_add_u32 s21, s21, {8*P}\n"
        body += f"s_and_b32 s21, s21, {region-1}\n"
    body += f"""
s_sub_u32 s12, s12, 1
s_cmp_lg_u32 s12, 0
s_cbranch_scc1 L_{name}
s_waitcnt vmcnt(0) lgkmcnt(0)
s_memtime s[24:25]
s_waitcnt lgkmcnt(0)
s_sub_u32 s24, s24, s30
v_mov_b32 v3, s24
s_lshl_b32 s13, s2, 6
v_lshlrev_b32 v4, 2, v2
v_add_u32 v4, s13, v4
global_store_dword v4, v3, s[4:5]
s_waitcnt vmcnt(0)
"""
    return kernel_text(name, body, vgpr=512, accum=256)
tests = {
 "bare": dict(nd=0, barrier=False, pats=[['', '', '', '']]),
 "tr_w": dict(nd=0, barrier=False, pats=[['', 'a', 'b', 'w']]),
 "tr_w_bar": dict(nd=0, pats=[['', 'a', 'b', 'w']]),
 "v1": dict(nd=0, pats=[['v', 'a', 'b', 'w']]),
 "v2": dict(nd=0, pats=[['vv', 'a', 'b', 'w']]),
 "V2": dict(nd=0, pats=[['VV', 'a', 'b', 'w']]),
 "t": dict(nd=0, pats=[['t', 'a', 'b', 'w']]),
 "av": dict(nd=0, pats=[['', 'av', 'b', 'w']]),
 "av_bv": dict(nd=0, pats=[['', 'av', 'bv', 'w']]),
 "vw": dict(nd=0, pats=[['', 'a', 'b', 'vw']]),
 "full_v": dict(nd=0, pats=[['vv', 'av', 'bv', 'vw']]),
 "full_V": dict(nd=0, pats=[['VV', 'aV', 'bV', 'Vw']]),
 "full_t": dict(nd=0, pats=[['t', 'av', 'bv', 'vw']]),
 "ab_same": dict(nd=0, pats=[['', 'ab', '', 'w']]),
 "ab_same_full": dict(nd=0, pats=[['t', 'ab', 't', 'vw']]),
 "ab_w_same": dict(nd=0, pats=[['t', 't', 't', 'abw']]),
 "v3gap": dict(nd=0, pats=[['vvv', 'a', 'b', 'w']]),
 "v1all": dict(nd=0, pats=[['v', 'v', 'v', 'v']], barrier=False),
 "v2all": dict(nd=0, pats=[['vv', 'vv', 'vv', 'vv']], barrier=False),
 "s2all": dict(nd=0, pats=[['ss', 'ss', 'ss', 'ss']], barrier=False),
 "s3all": dict(nd=0, pats=[['sss', 'sss', 'sss', 'sss']], barrier=False),
 "vs_all": dict(nd=0, pats=[['vvs', 'vvs', 'vvs', 'vvs']], barrier=False),
 "d4": dict(nd=4, pats=[['', 'a', 'b', 'w'], ['d', 'am', 'b', 'w']]),
 "d4_v": dict(nd=4, pats=[['vv', 'av', 'bv', 'vw'], ['d', 'am', 'bv', 'vw']]),
 "d4_dv": dict(nd=4, pats=[['vv', 'av', 'bv', 'vw'], ['dv', 'am', 'bv', 'vw']]),
 "d7_x": dict(nd=7, nx=1, pats=[['d', 'ax', 'bm', 'w']]),
 "x": dict(nd=0, nx=1, pats=[['', 'ax', 'b', 'w']]),
}
text = HEAD + "".join(mk(n, **t) for n, t in tests.items()) + meta(list(tests), 4, vgpr=512)
co = build("m6b", text)
if not ON_GPU: raise SystemExit
out = cl.DeviceBuffer(1 << 20)
src = cl.DeviceBuffer(64 << 20)
memset(src.ptr, 0, 64 << 20); sync()
k0 = cl.AsmKernel(co, list(tests)[0], check=False)
for n, t in tests.items():
    f = k0.function(n)
    ka = cl.pack_ptr_kernargs([out.ptr, src.ptr, 0, 0])
    for _ in range(2):
        cl._launch_function(f, (256, 1, 1), (256, 1, 1), ka, 131072)
        sync()
    o = out.to_numpy(np.uint32, (256, 16))[:, :4]
    cyc = np.median(o.max(axis=1))
    print(f"{n:22s} cycles/stage {cyc/(200*4):7.1f} (ideal 512)")
```
